```python
import torch

def _softmax(x, axis=-1):
    return torch.softmax(x, dim=axis)
def _gelu(x):
    return torch.nn.functional.gelu(x, approximate="tanh")
def _silu(x):
    return torch.nn.functional.silu(x)
def _sigmoid(x):
    return torch.sigmoid(x)
def _layernorm(x, axis=-1, eps=1e-5):
    m = x.mean(dim=axis, keepdim=True)
    v = x.var(dim=axis, keepdim=True, unbiased=False)
    return (x - m) / torch.sqrt(v + eps)
def _scatter_add(tgt, idx, src, axis=0):
    return tgt.clone().index_add_(axis, idx, src)
def _segment_sum(src, seg, n):
    out = torch.zeros((n,) + src.shape[1:], dtype=src.dtype)
    return out.index_add_(0, seg, src)
def _pad(x, pw):
    flat = tuple(v for pair in reversed(pw) for v in pair)
    return torch.nn.functional.pad(x, flat)

kernel_name = 'standalone__paged_block_table_kv_radixattention__sampling'

def setup_inputs():

    _w = (lambda a: (lambda t: t.to(torch.bfloat16) if t.is_floating_point() else t)(torch.as_tensor(a)))
    B, H, Hkv, Dh = 8, 32, 8, 128
    Lk = 2048
    bs = 16
    nb = max(2, Lk // bs)
    P = max(1, nb // 2)
    n_phys = P + B * (nb - P)
    shared = torch.arange(P, dtype=torch.int64)
    priv = P + torch.arange(B * (nb - P), dtype=torch.int64).reshape(B, nb - P)
    bt = torch.cat([torch.tile(shared[None, :], (B, 1)), priv], dim=1)
    ctx = nb * bs - (torch.arange(1, B + 1, dtype=torch.int64) * 2654435761) % max(1, (nb * bs - P * bs) // 2)
    return {
        "q": _w((lambda *s: torch.randn(*s, dtype=torch.bfloat16) * 0.8)(B, H, Dh)),
        "k_cache": _w((lambda *s: torch.randn(*s, dtype=torch.bfloat16) * 0.8)(n_phys, bs, Hkv, Dh)),
        "v_cache": _w((lambda *s: torch.randn(*s, dtype=torch.bfloat16) * 0.05)(n_phys, bs, Hkv, Dh)),
        "block_table": _w(bt.to(torch.int64)),
        "ctx_lens": _w(torch.as_tensor(ctx).to(torch.int64)),
    }

def reference(q, k_cache, v_cache, block_table, ctx_lens):
    B, H, Dh = q.shape
    n_phys, bs, Hkv, _ = k_cache.shape
    nb = block_table.shape[1]
    Lk = nb * bs
    rep = H // Hkv
    k = k_cache[block_table].reshape(B, Lk, Hkv, Dh)
    v = v_cache[block_table].reshape(B, Lk, Hkv, Dh)
    k = (lambda x, n, axis: torch.repeat_interleave(x, n, dim=axis))(k, rep, axis=2)
    v = (lambda x, n, axis: torch.repeat_interleave(x, n, dim=axis))(v, rep, axis=2)
    scores = torch.einsum("bhd,bkhd->bhk", q, k) * (Dh ** -0.5)
    pos = torch.arange(Lk)
    valid = pos[None, :] < ctx_lens[:, None]
    scores = torch.where(valid[:, None, :], scores, -1e9)
    p = _softmax(scores, axis=-1)
    return torch.einsum("bhk,bkhd->bhd", p, v)
```

```python
import sys, struct

FUSED = True
for a in sys.argv[1:]:
    if a == 'split': FUSED = False

NAME = "standalone__paged_block_table_kv_radixattention__sampling"
L = []
def e(s=""): L.append("    " + s if s and not s.endswith(":") else s)
def lab(s): L.append(s + ":")

def f2u(f): return struct.unpack('<I', struct.pack('<f', f))[0]

NWG = 576
KV_BYTES = 576*32768
WS_O = 4096*512
WS_ML = 4096*8
LDS_P = 32768
LDS_MAX = 40960
LDS_SUM = LDS_MAX + 32*80
LDS_FLAG = LDS_SUM + 32*80
LDS_TOTAL = LDS_FLAG + 64

SCALE = (128 ** -0.5) * 1.4426950408889634
MASKV = -1e9 * 1.4426950408889634

sQ, sK, sV, sBT, sCTX, sOUT, sDBG, sWS = 20, 24, 28, 32, 36, 40, 44, 48
sHKV, sCHUNK, sB, sW = 52, 53, 54, 55
vLANE, vG, vN = 1, 2, 3
vKOFF, vVOFF0, vVOFF1, vBT = 4, 5, 6, 7
vMAXW, vMAXR, vPW, vTR0, vTR1, vPOS, vOUT, vMASK = 8, 9, 10, 11, 12, 13, 14, 15
vK, vQ, vS = 16, 48, 80
vCTX, vM, vL = 96, 98, 100
vML = 102
vP = 104
vT = 112
vQOFF, vBTOFF = 108, 109

def srd(base, lo, nbytes):
    e(f"s_mov_b32 s{base}, s{lo}")
    e(f"s_and_b32 s{base+1}, s{lo+1}, 0xffff")
    e(f"s_mov_b32 s{base+2}, {nbytes}")
    e(f"s_mov_b32 s{base+3}, 0x00020000")

def combine_code(tag):
    sc = " sc1" if FUSED else ""
    e(f"s_lshl_b32 s56, s{sB}, 3")
    e(f"s_add_u32 s56, s56, s{sHKV}")
    e(f"s_lshl_b32 s56, s56, 6")
    e(f"s_add_u32 s56, s56, s{sW}")
    e(f"s_lshl_b32 s57, s56, 9")
    e(f"v_lshlrev_b32 v60, 3, v{vLANE}")
    e(f"v_add_u32 v60, s57, v60")
    e(f"s_lshl_b32 s57, s56, 3")
    e(f"s_add_u32 s57, s57, {WS_O}")
    e(f"v_mov_b32 v61, s57")
    for c in range(16):
        e(f"buffer_load_dwordx2 v[{64+2*c}:{65+2*c}], v61, s[{sWS}:{sWS+3}], 0 offen offset:{c*32}{sc}")
    for c in range(16):
        e(f"s_mov_b32 s58, {(c//2)*4096}")
        e(f"buffer_load_dwordx2 v[{16+2*c}:{17+2*c}], v60, s[{sWS}:{sWS+3}], s58 offen offset:{(c%2)*2048}{sc}")
    e("s_waitcnt vmcnt(16)")
    e("v_max3_f32 v62, v64, v66, v68")
    for c in range(3, 15, 2):
        e(f"v_max3_f32 v62, v62, v{64+2*c}, v{66+2*c}")
    e("v_max_f32 v62, v62, v94")
    for c in range(16):
        e(f"v_sub_f32 v{64+2*c}, v{64+2*c}, v62")
    for c in range(16):
        e(f"v_exp_f32 v{64+2*c}, v{64+2*c}")
    e("s_nop 0")
    e("v_mul_f32 v63, v64, v65")
    for c in range(1, 16):
        e(f"v_fmac_f32 v63, v{64+2*c}, v{65+2*c}")
    e("s_waitcnt vmcnt(0)")
    e("v_mul_f32 v96, v64, v16")
    e("v_mul_f32 v97, v64, v17")
    for c in range(1, 16):
        e(f"v_fmac_f32 v96, v{64+2*c}, v{16+2*c}")
        e(f"v_fmac_f32 v97, v{64+2*c}, v{17+2*c}")
    e("v_rcp_f32 v98, v63")
    e("s_nop 0")
    e("v_fma_f32 v99, -v63, v98, 1.0")
    e("v_fmac_f32 v98, v99, v98")
    e("v_mul_f32 v96, v96, v98")
    e("v_mul_f32 v97, v97, v98")
    e("v_cvt_pk_bf16_f32 v96, v96, v97")
    e(f"s_lshl_b32 s56, s{sB}, 5")
    e(f"s_lshl_b32 s57, s{sHKV}, 2")
    e("s_add_u32 s56, s56, s57")
    e(f"s_add_u32 s56, s56, s{sW}")
    e("s_lshl_b32 s56, s56, 8")
    e(f"v_lshlrev_b32 v60, 2, v{vLANE}")
    e(f"buffer_store_dword v96, v60, s[{sOUT}:{sOUT+3}], s56 offen")

def body(wide):
    nq = 2 if wide else 1
    tag = "W" if wide else "N"
    sc = " sc1" if FUSED else ""
    e(f"s_lshl_b32 s56, s{sW}, 1")
    e(f"s_add_u32 s59, s56, 1")
    e(f"v_readlane_b32 s57, v{vBT}, s56")
    e(f"v_readlane_b32 s58, v{vBT}, s59")
    e("s_nop 3")
    e("s_lshl_b32 s57, s57, 15")
    e("s_lshl_b32 s58, s58, 15")
    for kt in range(2):
        for s in range(4):
            r = vK + kt*16 + s*4
            e(f"buffer_load_dwordx4 v[{r}:{r+3}], v{vKOFF}, s[{sK}:{sK+3}], s{57+kt} offen offset:{s*64}")
    e(f"s_lshl_b32 s60, s{sW}, 13")
    for i in range(8):
        t = i >> 2; hi = (i >> 1) & 1; odd = i & 1
        e(f"s_add_u32 s59, s{57+t}, {hi*16384}")
        e(f"s_add_u32 m0, s60, {i*1024}")
        e("s_nop 0")
        e(f"buffer_load_dwordx4 v{vVOFF1 if odd else vVOFF0}, s[{sV}:{sV+3}], s59 offen lds")
    e("s_waitcnt vmcnt(8)")
    for s in range(4):
        for kt in range(2):
            for qt in range(nq):
                d = vS + (kt*2+qt)*4
                a = vK + kt*16 + s*4
                b = vQ + qt*16 + s*4
                c = "0" if s == 0 else f"v[{d}:{d+3}]"
                e(f"v_mfma_f32_16x16x32_bf16 v[{d}:{d+3}], v[{a}:{a+3}], v[{b}:{b+3}], {c}")
    for qt in range(nq):
        e(f"v_sub_u32 v{vT+qt}, v{vCTX+qt}, v{vPOS}")
    e(f"s_mov_b32 s56, {f2u(SCALE):#x}")
    e("s_nop 7")
    for qt in range(nq):
        for kt in range(2):
            for i in range(4):
                r = vS + (kt*2+qt)*4 + i
                e(f"v_cmp_lt_i32 vcc, {kt*16+i}, v{vT+qt}")
                e(f"v_mul_f32 v{r}, s56, v{r}")
                e("s_nop 0")
                e(f"v_cndmask_b32 v{r}, v{vMASK}, v{r}, vcc")
    for qt in range(nq):
        a = vS + qt*4; b = vS + (2+qt)*4
        e(f"v_max3_f32 v{vM+qt}, v{a}, v{a+1}, v{a+2}")
        e(f"v_max3_f32 v{vM+qt}, v{vM+qt}, v{a+3}, v{b}")
        e(f"v_max3_f32 v{vM+qt}, v{vM+qt}, v{b+1}, v{b+2}")
        e(f"v_max_f32 v{vM+qt}, v{vM+qt}, v{b+3}")
        e(f"ds_write_b32 v{vMAXW}, v{vM+qt} offset:{qt*1280}")
    e("s_waitcnt lgkmcnt(0)")
    e("s_barrier")
    for qt in range(nq):
        for j in range(4):
            e(f"ds_read_b128 v[{vT+4*j}:{vT+4*j+3}], v{vMAXR} offset:{qt*1280+16*j}")
        e("s_waitcnt lgkmcnt(0)")
        e(f"v_max3_f32 v{vM+qt}, v{vT}, v{vT+1}, v{vT+2}")
        for j in range(3, 15, 2):
            e(f"v_max3_f32 v{vM+qt}, v{vM+qt}, v{vT+j}, v{vT+j+1}")
        e(f"v_max_f32 v{vM+qt}, v{vM+qt}, v{vT+15}")
    for qt in range(nq):
        for kt in range(2):
            for i in range(4):
                r = vS + (kt*2+qt)*4 + i
                e(f"v_sub_f32 v{r}, v{r}, v{vM+qt}")
    for qt in range(nq):
        for kt in range(2):
            for i in range(4):
                r = vS + (kt*2+qt)*4 + i
                e(f"v_exp_f32 v{r}, v{r}")
    e("s_nop 0")
    for qt in range(nq):
        a = vS + qt*4; b = vS + (2+qt)*4
        e(f"v_add_f32 v{vL+qt}, v{a}, v{a+1}")
        e(f"v_add_f32 v{vT}, v{a+2}, v{a+3}")
        e(f"v_add_f32 v{vT+1}, v{b}, v{b+1}")
        e(f"v_add_f32 v{vT+2}, v{b+2}, v{b+3}")
        e(f"v_add_f32 v{vL+qt}, v{vL+qt}, v{vT}")
        e(f"v_add_f32 v{vT+1}, v{vT+1}, v{vT+2}")
        e(f"v_add_f32 v{vL+qt}, v{vL+qt}, v{vT+1}")
        e(f"ds_write_b32 v{vMAXW}, v{vL+qt} offset:{qt*1280 + LDS_SUM - LDS_MAX}")
        p = vP + qt*4
        e(f"v_cvt_pk_bf16_f32 v{p}, v{a}, v{a+1}")
        e(f"v_cvt_pk_bf16_f32 v{p+1}, v{a+2}, v{a+3}")
        e(f"v_cvt_pk_bf16_f32 v{p+2}, v{b}, v{b+1}")
        e(f"v_cvt_pk_bf16_f32 v{p+3}, v{b+2}, v{b+3}")
        e(f"ds_write_b128 v{vPW}, v[{p}:{p+3}] offset:{qt*1024}")
    e("s_waitcnt vmcnt(0) lgkmcnt(0)")
    e("s_barrier")
    e(f"v_lshlrev_b32 v{vT+15}, 4, v{vLANE}")
    for w2 in range(4):
        for qt in range(nq):
            r = vK + (w2*2+qt)*4
            e(f"ds_read_b128 v[{r}:{r+3}], v{vT+15} offset:{LDS_P + w2*2048 + qt*1024}")
        for dt in range(2):
            r = vQ + (w2*2+dt)*4
            va = vTR0 if dt == 0 else vTR1
            e(f"ds_read_b64_tr_b16 v[{r}:{r+1}], v{va} offset:{w2*8192}")
            e(f"ds_read_b64_tr_b16 v[{r+2}:{r+3}], v{va} offset:{w2*8192+4096}")
    per = nq + 4
    tot = 4*per
    for w2 in range(4):
        e(f"s_waitcnt lgkmcnt({min(15, tot - (w2+1)*per)})")
        for dt in range(2):
            for qt in range(nq):
                d = vS + (dt*2+qt)*4
                a = vQ + (w2*2+dt)*4
                b = vK + (w2*2+qt)*4
                c = "0" if w2 == 0 else f"v[{d}:{d+3}]"
                e(f"v_mfma_f32_16x16x32_bf16 v[{d}:{d+3}], v[{a}:{a+3}], v[{b}:{b+3}], {c}")
    for qt in range(nq):
        for j in range(4):
            e(f"ds_read_b128 v[{vT+4*j}:{vT+4*j+3}], v{vMAXR} offset:{qt*1280+16*j + LDS_SUM - LDS_MAX}")
        e("s_waitcnt lgkmcnt(0)")
        for j in range(0, 16, 2):
            e(f"v_add_f32 v{vT+j}, v{vT+j}, v{vT+j+1}")
        for j in range(0, 16, 4):
            e(f"v_add_f32 v{vT+j}, v{vT+j}, v{vT+j+2}")
        e(f"v_add_f32 v{vT}, v{vT}, v{vT+4}")
        e(f"v_add_f32 v{vT+8}, v{vT+8}, v{vT+12}")
        e(f"v_add_f32 v{vL+qt}, v{vT}, v{vT+8}")
    e("s_nop 7")
    lab(f"L_out_{tag}")
    e(f"s_lshl_b32 s56, s{sHKV}, 4")
    e(f"s_add_u32 s56, s56, s{sCHUNK}")
    e(f"s_lshl_b32 s56, s56, 2")
    if wide:
        e(f"v_lshrrev_b32 v{vT}, 2, v{vN}")
        e(f"v_lshlrev_b32 v{vT}, 9, v{vT}")
        e(f"v_and_b32 v{vT+1}, 3, v{vN}")
        e(f"v_add3_u32 v{vT}, v{vT}, v{vT+1}, s56")
    else:
        e(f"s_lshl_b32 s57, s{sB}, 9")
        e("s_add_u32 s56, s56, s57")
        e(f"v_add_u32 v{vT}, s56, v{vN}")
    e(f"v_lshlrev_b32 v{vOUT}, 9, v{vT}")
    e(f"s_lshl_b32 s57, s{sW}, 7")
    e(f"v_lshl_add_u32 v{vT+1}, v{vG}, 4, s57")
    e(f"v_add_u32 v{vOUT}, v{vOUT}, v{vT+1}")
    e(f"v_lshlrev_b32 v{vT+2}, 3, v{vT}")
    e(f"v_add_u32 v{vT+2}, {WS_O}, v{vT+2}")
    e("s_mov_b32 s58, 0")
    e(f"s_mov_b32 s59, {2048*512}")
    e(f"s_mov_b32 s60, {2048*8}")
    if not wide:
        e(f"v_cmp_gt_u32 vcc, 4, v{vN}")
        e("s_and_saveexec_b64 s[62:63], vcc")
    for qt in range(nq):
        for dt in range(2):
            d = vS + (dt*2+qt)*4
            e(f"buffer_store_dwordx4 v[{d}:{d+3}], v{vOUT}, s[{sWS}:{sWS+3}], s{58+qt} offen offset:{dt*64}{sc}")
    e(f"v_cmp_gt_u32 vcc, 16, v0")
    e("s_and_saveexec_b64 s[64:65], vcc")
    e(f"s_cbranch_execz L_noml_{tag}")
    for qt in range(nq):
        e(f"v_mov_b32 v{vML}, v{vM+qt}")
        e(f"v_mov_b32 v{vML+1}, v{vL+qt}")
        so = "s58" if qt == 0 else "s60"
        e(f"buffer_store_dwordx2 v[{vML}:{vML+1}], v{vT+2}, s[{sWS}:{sWS+3}], {so} offen{sc}")
        e("s_nop 1")
    lab(f"L_noml_{tag}")
    e("s_mov_b64 exec, -1")

hdr = []
if FUSED:
    hdr.append(f"; @launch grid=({NWG},1,1) block=(256,1,1) lds={LDS_TOTAL}")
else:
    hdr.append(f"; @launch kernel={NAME}_kernel grid=({NWG},1,1) block=(256,1,1) lds={LDS_TOTAL}")
    hdr.append(f"; @launch kernel=combine_kernel grid=(64,1,1) block=(256,1,1) lds=0")

L.append('.amdgcn_target "amdgcn-amd-amdhsa--gfx950"')
L.append(".text")
L.append(f".globl {NAME}_kernel")
L.append(".p2align 8")
L.append(f".type {NAME}_kernel,@function")
lab(f"{NAME}_kernel")
e("s_load_dwordx16 s[4:19], s[0:1], 0")
e(f"s_cmp_ge_u32 s2, {NWG}")
e("s_cbranch_scc1 L_end")
e(f"v_and_b32 v{vLANE}, 63, v0")
e(f"v_lshrrev_b32 v{vG}, 6, v0")
e("s_nop 0")
e(f"v_readfirstlane_b32 s{sW}, v{vG}")
e(f"v_lshrrev_b32 v{vG}, 4, v{vLANE}")
e(f"v_and_b32 v{vN}, 15, v{vLANE}")
e(f"s_and_b32 s{sHKV}, s2, 7")
e("s_waitcnt lgkmcnt(0)")
srd(sQ, 4, 8*32*128*2)
srd(sK, 6, KV_BYTES)
srd(sV, 8, KV_BYTES)
srd(sBT, 10, 8*128*4)
srd(sCTX, 12, 32)
srd(sOUT, 14, 8*32*128*2)
srd(sDBG, 16, 256)
srd(sWS, 18, WS_O + WS_ML)
e(f"s_lshl_b32 s56, s{sHKV}, 8")
e(f"v_lshlrev_b32 v{vKOFF}, 11, v{vN}")
e(f"v_lshl_add_u32 v{vKOFF}, v{vG}, 4, v{vKOFF}")
e(f"v_add_u32 v{vKOFF}, s56, v{vKOFF}")
for odd in range(2):
    vo = vVOFF1 if odd else vVOFF0
    e(f"v_add_u32 v{vT}, {4*odd}, v{vG}")
    e(f"v_lshrrev_b32 v{vT+1}, 1, v{vN}")
    e(f"v_xor_b32 v{vT+1}, v{vT+1}, v{vT}")
    e(f"v_lshlrev_b32 v{vT+1}, 1, v{vT+1}")
    e(f"v_and_b32 v{vT+2}, 1, v{vN}")
    e(f"v_or_b32 v{vT+1}, v{vT+1}, v{vT+2}")
    e(f"v_lshlrev_b32 v{vT+1}, 4, v{vT+1}")
    e(f"v_lshl_add_u32 v{vo}, v{vT}, 11, v{vT+1}")
    e(f"v_add_u32 v{vo}, s56, v{vo}")
e(f"v_mul_u32_u24 v{vMAXR}, 80, v{vN}")
e(f"v_add_u32 v{vMAXR}, {LDS_MAX}, v{vMAXR}")
e(f"s_lshl_b32 s57, s{sW}, 4")
e(f"v_lshl_add_u32 v{vMAXW}, v{vG}, 2, s57")
e(f"v_add_u32 v{vMAXW}, v{vMAXW}, v{vMAXR}")
e(f"s_lshl_b32 s57, s{sW}, 11")
e(f"s_add_u32 s57, s57, {LDS_P}")
e(f"v_lshl_add_u32 v{vPW}, v{vLANE}, 4, s57")
e(f"v_lshrrev_b32 v{vT}, 2, v{vN}")
e(f"v_lshl_add_u32 v{vT}, v{vG}, 2, v{vT}")
e(f"v_and_b32 v{vT+1}, 7, v{vT}")
e(f"v_and_b32 v{vT+2}, 3, v{vN}")
e(f"v_lshlrev_b32 v{vT+2}, 3, v{vT+2}")
e(f"v_lshl_add_u32 v{vT+2}, v{vT}, 8, v{vT+2}")
e(f"s_lshl_b32 s57, s{sW}, 1")
e(f"s_add_u32 s58, s57, 1")
e(f"v_xor_b32 v{vT+3}, s57, v{vT+1}")
e(f"v_lshl_add_u32 v{vTR0}, v{vT+3}, 5, v{vT+2}")
e(f"v_xor_b32 v{vT+3}, s58, v{vT+1}")
e(f"v_lshl_add_u32 v{vTR1}, v{vT+3}, 5, v{vT+2}")
e(f"v_mov_b32 v{vMASK}, {f2u(MASKV):#x}")
e(f"v_and_b32 v{vQOFF}, 3, v{vN}")
e(f"v_lshlrev_b32 v{vQOFF}, 8, v{vQOFF}")
e(f"v_lshl_add_u32 v{vQOFF}, v{vG}, 4, v{vQOFF}")
e(f"s_lshl_b32 s57, s{sHKV}, 10")
e(f"v_add_u32 v{vQOFF}, s57, v{vQOFF}")
e(f"v_and_b32 v{vBTOFF}, 7, v{vLANE}")
e(f"v_lshlrev_b32 v{vBTOFF}, 2, v{vBTOFF}")
e("s_cmp_ge_u32 s2, 64")
e("s_cbranch_scc1 L_ptype")
e(f"s_lshr_b32 s{sCHUNK}, s2, 3")
e(f"s_lshl_b32 s57, s{sCHUNK}, 5")
e(f"v_lshrrev_b32 v{vT+6}, 3, v{vLANE}")
e(f"v_lshl_add_u32 v{vT+6}, v{vT+6}, 9, v{vBTOFF}")
e(f"buffer_load_dword v{vT+7}, v{vT+6}, s[{sBT}:{sBT+3}], s57 offen")
e(f"buffer_load_dword v{vBT}, v{vBTOFF}, s[{sBT}:{sBT+3}], s57 offen")
e(f"s_lshl_b32 s57, s{sCHUNK}, 7")
e(f"s_lshl_b32 s58, s{sW}, 5")
e("s_add_u32 s57, s57, s58")
e(f"v_lshl_add_u32 v{vPOS}, v{vG}, 2, s57")
e(f"v_lshrrev_b32 v{vT+8}, 2, v{vN}")
e(f"v_lshl_add_u32 v{vT+9}, v{vT+8}, 13, v{vQOFF}")
e(f"s_mov_b32 s58, {4*8192}")
for qt in range(2):
    for s in range(4):
        r = vQ + qt*16 + s*4
        so = "0" if qt == 0 else "s58"
        e(f"buffer_load_dwordx4 v[{r}:{r+3}], v{vT+9}, s[{sQ}:{sQ+3}], {so} offen offset:{s*64}")
e(f"v_lshlrev_b32 v{vT+8}, 2, v{vT+8}")
e(f"buffer_load_dword v{vCTX}, v{vT+8}, s[{sCTX}:{sCTX+3}], 0 offen")
e(f"buffer_load_dword v{vCTX+1}, v{vT+8}, s[{sCTX}:{sCTX+3}], 0 offen offset:16")
e("s_waitcnt vmcnt(10)")
e(f"v_cmp_ne_u32 vcc, v{vT+7}, v{vBT}")
e("s_cbranch_vccnz L_fallback")
body(True)
e("s_branch L_tail")
lab("L_fallback")
e(f"s_mov_b32 s{sB}, 0")
e("s_branch L_narrow")
lab("L_ptype")
e("s_sub_u32 s57, s2, 64")
e(f"s_lshr_b32 s{sB}, s57, 3")
e(f"s_and_b32 s{sB}, s{sB}, 7")
e(f"s_lshr_b32 s{sCHUNK}, s57, 6")
e(f"s_add_u32 s{sCHUNK}, s{sCHUNK}, 8")
e(f"s_lshl_b32 s57, s{sCHUNK}, 7")
e(f"s_lshl_b32 s58, s{sW}, 5")
e("s_add_u32 s57, s57, s58")
e(f"v_lshl_add_u32 v{vPOS}, v{vG}, 2, s57")
lab("L_narrow")
e("s_waitcnt vmcnt(0)")
e(f"s_lshl_b32 s57, s{sB}, 9")
e(f"s_lshl_b32 s58, s{sCHUNK}, 5")
e("s_add_u32 s57, s57, s58")
e(f"buffer_load_dword v{vBT}, v{vBTOFF}, s[{sBT}:{sBT+3}], s57 offen")
e(f"s_lshl_b32 s57, s{sB}, 2")
e("v_mov_b32 v{0}, 0".format(vT+8))
e(f"buffer_load_dword v{vCTX}, v{vT+8}, s[{sCTX}:{sCTX+3}], s57 offen")
e(f"s_lshl_b32 s58, s{sB}, 13")
for s in range(4):
    r = vQ + s*4
    e(f"buffer_load_dwordx4 v[{r}:{r+3}], v{vQOFF}, s[{sQ}:{sQ+3}], s58 offen offset:{s*64}")
e("s_waitcnt vmcnt(4)")
e(f"v_readfirstlane_b32 s57, v{vCTX}")
e("s_nop 3")
e("s_cmp_lt_i32 s57, 1")
e("s_cbranch_scc1 L_notempty")
e(f"s_lshl_b32 s58, s{sCHUNK}, 7")
e("s_cmp_lt_i32 s58, s57")
e("s_cbranch_scc1 L_notempty")
for i in range(16):
    e(f"v_mov_b32 v{vS+i}, 0")
e(f"v_mov_b32 v{vM}, 0xff800000")
e(f"v_mov_b32 v{vL}, 0")
e("s_waitcnt vmcnt(0)")
e("s_branch L_out_N")
lab("L_notempty")
body(False)
e("s_cmp_ge_u32 s2, 64")
e("s_cbranch_scc1 L_tail")
e(f"s_add_u32 s{sB}, s{sB}, 1")
e(f"s_cmp_ge_u32 s{sB}, 8")
e("s_cbranch_scc1 L_tail")
e("s_waitcnt vmcnt(0) lgkmcnt(0)")
e("s_barrier")
e("s_branch L_narrow")
lab("L_tail")
if FUSED:
    e("s_waitcnt vmcnt(0) lgkmcnt(0)")
    e("s_barrier")
    e(f"s_cmp_lg_u32 s{sW}, 0")
    e("s_cbranch_scc1 L_tail_wait")
    e("s_cmp_ge_u32 s2, 64")
    e("s_cselect_b32 s57, 1, 8")
    e(f"s_cselect_b32 s58, s{sB}, 0")
    e(f"v_add_u32 v{vT}, s58, v{vLANE}")
    e(f"v_lshlrev_b32 v{vT}, 3, v{vT}")
    e(f"v_add_u32 v{vT}, s{sHKV}, v{vT}")
    e(f"v_lshlrev_b32 v{vT}, 2, v{vT}")
    e(f"v_mov_b32 v{vT+1}, 1")
    e(f"v_cmp_gt_u32 vcc, s57, v{vLANE}")
    e("s_and_saveexec_b64 s[62:63], vcc")
    e(f"buffer_atomic_add v{vT+1}, v{vT}, s[{sDBG}:{sDBG+3}], 0 offen sc0")
    e("s_waitcnt vmcnt(0)")
    e(f"v_cmp_eq_u32 vcc, 15, v{vT+1}")
    e("s_mov_b64 exec, -1")
    e("s_nop 1")
    e("s_lshl_b32 s57, vcc_lo, s58")
    e(f"v_mov_b32 v{vT}, {LDS_FLAG}")
    e(f"v_mov_b32 v{vT+1}, s57")
    e(f"ds_write_b32 v{vT}, v{vT+1}")
    e("s_waitcnt lgkmcnt(0)")
    lab("L_tail_wait")
    e("s_barrier")
    e(f"v_mov_b32 v{vT}, {LDS_FLAG}")
    e(f"ds_read_b32 v{vT+1}, v{vT}")
    e("s_waitcnt lgkmcnt(0)")
    e(f"v_readfirstlane_b32 s61, v{vT+1}")
    e("s_nop 3")
    lab("L_comb_loop")
    e("s_cmp_eq_u32 s61, 0")
    e("s_cbranch_scc1 L_end")
    e(f"s_ff1_i32_b32 s{sB}, s61")
    e(f"s_lshl_b32 s57, 1, s{sB}")
    e("s_andn2_b32 s61, s61, s57")
    combine_code("F")
    e("s_branch L_comb_loop")
lab("L_end")
e("s_endpgm")

if not FUSED:
    L.append(".globl combine_kernel")
    L.append(".p2align 8")
    L.append(".type combine_kernel,@function")
    lab("combine_kernel")
    e("s_load_dwordx16 s[4:19], s[0:1], 0")
    e("s_cmp_ge_u32 s2, 64")
    e("s_cbranch_scc1 L_cend")
    e(f"v_and_b32 v{vLANE}, 63, v0")
    e(f"v_lshrrev_b32 v{vG}, 6, v0")
    e("s_nop 0")
    e(f"v_readfirstlane_b32 s{sW}, v{vG}")
    e(f"s_and_b32 s{sHKV}, s2, 7")
    e(f"s_lshr_b32 s{sB}, s2, 3")
    e("s_waitcnt lgkmcnt(0)")
    srd(sOUT, 14, 8*32*128*2)
    srd(sWS, 18, WS_O + WS_ML)
    combine_code("C")
    lab("L_cend")
    e("s_endpgm")

L.append('.section .rodata,"a"')
def kd(name):
    L.append(".p2align 6")
    L.append(f".amdhsa_kernel {name}")
    L.append("  .amdhsa_next_free_vgpr 128")
    L.append("  .amdhsa_next_free_sgpr 72")
    L.append("  .amdhsa_accum_offset 128")
    L.append("  .amdhsa_group_segment_fixed_size 0")
    L.append("  .amdhsa_kernarg_size 64")
    L.append("  .amdhsa_user_sgpr_count 2")
    L.append("  .amdhsa_user_sgpr_kernarg_segment_ptr 1")
    L.append("  .amdhsa_system_sgpr_workgroup_id_x 1")
    L.append(".end_amdhsa_kernel")
kd(f"{NAME}_kernel")
if not FUSED: kd("combine_kernel")

out = "\n".join(hdr + L) + "\n"
open(f"cdna_kernels/{NAME}.s", "w").write(out)
print("ok", len(L))
```

```python
import sys, struct
ROT = 0; STAMP = False; NT = ' nt'; OUTP = None
for a in sys.argv[1:]:
    if a == 'stamp': STAMP = True
    if a == 'nont': NT = ''
    if a.startswith('rot='): ROT = int(a[4:])
    if a.startswith('o='): OUTP = a[2:]
NAME = "standalone__paged_block_table_kv_radixattention__sampling"
L = []
def e(s=""): L.append("    " + s)
def lab(s): L.append(s + ":")
def f2u(f): return struct.unpack('<I', struct.pack('<f', f))[0]

NW = 8
NWG = 256
KV_BYTES = 576*32768
NSH = 5
NSLOT = NSH + 4
WS_O = 64*NSLOT*4*512
WS_ML = 64*NSLOT*4*8
LDS_P = NW*8192
LDS_MAX = LDS_P + NW*2048
XS = 144
LDS_SUM = LDS_MAX + 32*XS
LDS_FLAG = LDS_SUM + 32*XS
LDS_Q = LDS_FLAG + 64
LDS_TOTAL = LDS_Q + 8192
SCALE = (128 ** -0.5) * 1.4426950408889634
MASKV = -1e9 * 1.4426950408889634

sQ, sK, sV, sBT, sOUT, sDBG, sWS, sCT = 20, 24, 28, 32, 36, 40, 44, 84
sHKV, sITEM, sB, sW, sCNT, sCOL0, sSLOT, sNIT = 48, 49, 50, 51, 52, 53, 54, 55
sPH0, sPH1 = 82, 83
sP0, sLIM, sCTXB = 88, 89, 90
sM8, sCHK = 92, 94
vLANE, vG, vN = 1, 2, 3
vKOFF, vVOFF0, vVOFF1, vEXP = 4, 5, 6, 7
vMAXW, vMAXR, vPW, vTR, vPOS, vOUT, vMASK, vQS = 8, 9, 10, 11, 12, 13, 14, 15
vK, vQ, vS = 16, 48, 80
vCTX, vM, vL = 96, 98, 100
vML = 102
vP = 104
vT = 112
vPA = 144
vVA = 208
vR, vSS, vCTXV, vNC, vBTO, vL4, vSSO = 240, 248, 250, 251, 252, 253, 254
NVGPR = 256
TT = 200

def stamp(i):
    if STAMP: e(f"s_memrealtime s[{66+2*i}:{67+2*i}]")
def stamp_flush(n):
    if not STAMP: return
    e("s_waitcnt lgkmcnt(0)")
    e(f"s_cmp_lg_u32 s{sW}, 0")
    e("s_cbranch_scc1 L_nostamp")
    e("s_lshl_b32 s56, s2, 6")
    e(f"s_add_u32 s56, s56, {WS_O + WS_ML}")
    e("v_mov_b32 v60, s56")
    for i in range(n):
        e(f"v_mov_b32 v61, s{66+2*i}")
        e(f"buffer_store_dword v61, v60, s[{sWS}:{sWS+3}], 0 offen offset:{4*i}")
        e("s_nop 1")
    lab("L_nostamp")

def srd(base, lo, nbytes):
    e(f"s_mov_b32 s{base}, s{lo}")
    e(f"s_and_b32 s{base+1}, s{lo+1}, 0xffff")
    e(f"s_mov_b32 s{base+2}, {nbytes}")
    e(f"s_mov_b32 s{base+3}, 0x00020000")

CM, CO = 16, 56
def combine_init():
    for c in range(NSH, NSLOT):
        e(f"v_mov_b32 v{CM+4*c}, 0xff800000")
        e(f"v_mov_b32 v{CM+4*c+1}, 0")
        e(f"v_mov_b32 v{CM+4*c+2}, 0xff800000")
        e(f"v_mov_b32 v{CM+4*c+3}, 0")
        for k in range(8): e(f"v_mov_b32 v{CO+8*c+k}, 0")
def combine_code():
    e(f"s_lshr_b32 s56, s61, s{sW}")
    e("s_and_b32 s56, s56, 1")
    e("s_cbranch_scc0 L_comb_done")
    e(f"v_readlane_b32 s59, v{vNC}, s{sW}")
    e(f"s_lshl_b32 s56, s{sW}, 3")
    e(f"s_add_u32 s56, s56, s{sHKV}")
    e(f"s_mul_i32 s57, s56, {NSLOT*2048}")
    e(f"s_mul_i32 s58, s56, {NSLOT*32}")
    e(f"s_add_u32 s58, s58, {WS_O}")
    e(f"v_lshrrev_b32 v130, 5, v{vLANE}")
    e(f"v_and_b32 v131, 31, v{vLANE}")
    e(f"v_lshlrev_b32 v132, 4, v130")
    e(f"v_lshlrev_b32 v133, 4, v131")
    e(f"v_lshl_add_u32 v133, v130, 10, v133")
    for c in range(NSLOT):
        if c >= NSH:
            e(f"s_cmp_le_u32 s59, {c-NSH}")
            e("s_cbranch_scc1 L_comb_ld")
        e(f"buffer_load_dwordx4 v[{CM+4*c}:{CM+4*c+3}], v132, s[{sWS}:{sWS+3}], s58 offen offset:{c*32} sc1")
        for hp in range(2):
            r = CO + 8*c + 4*hp
            e(f"buffer_load_dwordx4 v[{r}:{r+3}], v133, s[{sWS}:{sWS+3}], s57 offen offset:{hp*512} sc1")
        e("s_add_u32 s57, s57, 2048")
    lab("L_comb_ld")
    e(f"s_lshl_b32 s56, s{sW}, 5")
    e(f"s_lshl_b32 s57, s{sHKV}, 2")
    e("s_add_u32 s56, s56, s57")
    e("s_lshl_b32 s56, s56, 8")
    e("v_lshlrev_b32 v134, 3, v131")
    e("v_lshl_add_u32 v134, v130, 9, v134")
    e("s_waitcnt vmcnt(0)")
    for hp in range(2):
        m = lambda c: CM + 4*c + 2*hp
        M = 136 + hp
        e(f"v_max3_f32 v{M}, v{m(0)}, v{m(1)}, v{m(2)}")
        e(f"v_max3_f32 v{M}, v{M}, v{m(3)}, v{m(4)}")
        e(f"v_max3_f32 v{M}, v{M}, v{m(5)}, v{m(6)}")
        e(f"v_max3_f32 v{M}, v{M}, v{m(7)}, v{m(8)}")
    for hp in range(2):
        for c in range(NSLOT): e(f"v_sub_f32 v{CM+4*c+2*hp}, v{CM+4*c+2*hp}, v{136+hp}")
    for hp in range(2):
        for c in range(NSLOT): e(f"v_exp_f32 v{CM+4*c+2*hp}, v{CM+4*c+2*hp}")
    e("s_nop 0")
    for hp in range(2):
        Ls = 138 + hp
        e(f"v_mul_f32 v{Ls}, v{CM+2*hp}, v{CM+2*hp+1}")
        for c in range(1, NSLOT): e(f"v_fmac_f32 v{Ls}, v{CM+4*c+2*hp}, v{CM+4*c+2*hp+1}")
    for hp in range(2):
        e(f"v_rcp_f32 v{140+hp}, v{138+hp}")
    for hp in range(2):
        for k in range(4):
            d = 144 + 4*hp + k
            e(f"v_mul_f32 v{d}, v{CM+2*hp}, v{CO+4*hp+k}")
            for c in range(1, NSLOT): e(f"v_fmac_f32 v{d}, v{CM+4*c+2*hp}, v{CO+8*c+4*hp+k}")
    for hp in range(2):
        e(f"v_fma_f32 v142, -v{138+hp}, v{140+hp}, 1.0")
        e(f"v_fmac_f32 v{140+hp}, v142, v{140+hp}")
    for hp in range(2):
        for k in range(4): e(f"v_mul_f32 v{144+4*hp+k}, v{144+4*hp+k}, v{140+hp}")
        e(f"v_cvt_pk_bf16_f32 v{152+2*hp}, v{144+4*hp}, v{145+4*hp}")
        e(f"v_cvt_pk_bf16_f32 v{153+2*hp}, v{146+4*hp}, v{147+4*hp}")
        e(f"buffer_store_dwordx2 v[{152+2*hp}:{153+2*hp}], v134, s[{sOUT}:{sOUT+3}], s56 offen offset:{hp*256}")

dNB, dNP, dIN, dA, dBt = vT+16, vT+17, vT+18, vT+19, vT+20
def decode_common():
    e(f"v_add_u32 v{dA}, 15, v{vCTXV}")
    e(f"v_add_u32 v{dBt}, -1, v{vCTXV}")
    e(f"v_cmp_gt_u32 vcc, 0x800, v{dBt}")
    e(f"v_lshrrev_b32 v{dA}, 4, v{dA}")
    e(f"v_mov_b32 v{dNB}, 0x80")
    e("s_nop 0")
    e(f"v_cndmask_b32 v{dNB}, v{dNB}, v{dA}, vcc")
    e(f"v_subrev_u32 v{dA}, 63, v{dNB}")
    e(f"v_max_i32 v{dA}, 0, v{dA}")
    e(f"v_lshrrev_b32 v{dNP}, 1, v{dA}")
    e(f"v_add_u32 v{dA}, 7, v{dNP}")
    e(f"v_lshrrev_b32 v{dA}, 3, v{dA}")
    e(f"v_cndmask_b32 v{vNC}, 0, v{dA}, s[{sM8}:{sM8+1}]")
    e(f"v_mov_b32 v{dIN}, v{vNC}")
    e(f"v_add_u32 v{vEXP}, {NSH-1}, v{vNC}")
    e("s_nop 0")
    for sh in (1, 2, 4):
        e(f"v_add_u32_dpp v{dIN}, v{dIN}, v{dIN} row_shr:{sh} row_mask:0xf bank_mask:0xf bound_ctrl:0")
        e("s_nop 1")
    e(f"v_readlane_b32 s{sNIT}, v{dIN}, 7")
    e("s_nop 3")
    e(f"s_add_u32 s{sNIT}, s{sNIT}, {NSH}")

def body(wide):
    nq = 2 if wide else 1
    tag = "W" if wide else "N"
    QA = vT + 24
    if wide:
        e(f"s_and_b32 s56, s{sW}, 3")
        e("s_lshl_b32 s56, s56, 2")
        e(f"v_add_u32 v{vT+22}, s56, v{vG}")
        e(f"v_xor_b32 v{vT+22}, v{vT+22}, v{vN}")
        e(f"v_lshl_add_u32 v{vT+22}, v{vT+22}, 4, v{vQS}")
        e(f"s_lshl_b32 s56, s{sW}, 13")
        e(f"s_lshl_b32 s57, s{sW}, 10")
        e(f"s_add_u32 m0, s57, {LDS_Q}")
        e("s_nop 0")
        e(f"buffer_load_dwordx4 v{vT+22}, s[{sQ}:{sQ+3}], s56 offen lds")
    else:
        e(f"s_cmp_lg_u32 s{sW}, 0")
        e("s_cbranch_scc1 L_noq")
        e(f"v_xor_b32 v{vT+22}, v{vG}, v{vN}")
        e(f"v_lshl_add_u32 v{vT+22}, v{vT+22}, 4, v{vQS}")
        e(f"s_lshl_b32 s56, s{sB}, 13")
        e(f"s_mov_b32 m0, {LDS_Q}")
        e("s_nop 0")
        e(f"buffer_load_dwordx4 v{vT+22}, s[{sQ}:{sQ+3}], s56 offen lds")
        lab("L_noq")
    e(f"s_cmp_ge_u32 s{sW}, s{sCNT}")
    e(f"s_cbranch_scc1 L_idle1_{tag}")
    for kt in range(2):
        for s in range(4):
            r = vK + kt*16 + s*4
            e(f"buffer_load_dwordx4 v[{r}:{r+3}], v{vKOFF}, s[{sK}:{sK+3}], s{sPH0+kt} offen offset:{s*64}{NT}")
    if wide: decode_common()
    e(f"s_lshl_b32 s57, s{sCOL0}, 4")
    e(f"s_lshl_b32 s58, s{sW}, 5")
    e("s_add_u32 s57, s57, s58")
    e(f"v_lshl_add_u32 v{vPOS}, v{vG}, 2, s57")
    if wide:
        e(f"v_and_b32 v{vT+28}, 12, v{vN}")
        e(f"v_add_u32 v{vT+29}, 16, v{vT+28}")
        e(f"ds_bpermute_b32 v{vCTX}, v{vT+28}, v{vCTXV}")
        e(f"ds_bpermute_b32 v{vCTX+1}, v{vT+29}, v{vCTXV}")
        key = vN
    else:
        e(f"v_mov_b32 v{vCTX}, s{sCTXB}")
        e(f"v_and_b32 v{vT+21}, 3, v{vN}")
        key = vT + 21
    for s in range(4):
        e(f"v_add_u32 v{QA+s}, {4*s}, v{vG}")
        e(f"v_xor_b32 v{QA+s}, v{QA+s}, v{key}")
        e(f"v_lshlrev_b32 v{QA+s}, 4, v{QA+s}")
        e(f"v_lshl_add_u32 v{QA+s}, v{key}, 8, v{QA+s}")
        e(f"v_add_u32 v{QA+s}, {LDS_Q}, v{QA+s}")
    e("s_waitcnt vmcnt(8)")
    e("s_barrier")
    e(f"s_lshl_b32 s60, s{sW}, 13")
    for i in range(8):
        t = i >> 2; hi = (i >> 1) & 1; odd = i & 1
        e(f"s_add_u32 s59, s{sPH0+t}, {hi*16384}")
        e(f"s_add_u32 m0, s60, {i*1024}")
        e("s_nop 0")
        e(f"buffer_load_dwordx4 v{vVOFF1 if odd else vVOFF0}, s[{sV}:{sV+3}], s59 offen{NT} lds")
    for qt in range(nq):
        for s in range(4):
            r = vQ + qt*16 + s*4
            e(f"ds_read_b128 v[{r}:{r+3}], v{QA+s} offset:{qt*4096}")
    e("s_waitcnt vmcnt(8) lgkmcnt(0)")
    stamp(3)
    for s in range(4):
        for kt in range(2):
            for qt in range(nq):
                d = vS + (kt*2+qt)*4; a = vK + kt*16 + s*4; b = vQ + qt*16 + s*4
                c = "0" if s == 0 else f"v[{d}:{d+3}]"
                e(f"v_mfma_f32_16x16x32_bf16 v[{d}:{d+3}], v[{a}:{a+3}], v[{b}:{b+3}], {c}")
    for qt in range(nq):
        e(f"v_sub_u32 v{vT+qt}, v{vCTX+qt}, v{vPOS}")
    e(f"s_mov_b32 s56, {f2u(SCALE):#x}")
    e("s_nop 7")
    for qt in range(nq):
        for kt in range(2):
            for i in range(4):
                r = vS + (kt*2+qt)*4 + i
                e(f"v_cmp_lt_i32 vcc, {kt*16+i}, v{vT+qt}")
                e(f"v_mul_f32 v{r}, s56, v{r}")
                e("s_nop 0")
                e(f"v_cndmask_b32 v{r}, v{vMASK}, v{r}, vcc")
    for qt in range(nq):
        a = vS + qt*4; b = vS + (2+qt)*4
        e(f"v_max3_f32 v{vM+qt}, v{a}, v{a+1}, v{a+2}")
        e(f"v_max3_f32 v{vM+qt}, v{vM+qt}, v{a+3}, v{b}")
        e(f"v_max3_f32 v{vM+qt}, v{vM+qt}, v{b+1}, v{b+2}")
        e(f"v_max_f32 v{vM+qt}, v{vM+qt}, v{b+3}")
    e(f"s_branch L_maxw_{tag}")
    lab(f"L_idle1_{tag}")
    if wide: decode_common()
    e("s_waitcnt vmcnt(0)")
    e("s_barrier")
    for qt in range(nq):
        e(f"v_mov_b32 v{vM+qt}, 0xff800000")
    lab(f"L_maxw_{tag}")
    for qt in range(nq):
        e(f"ds_write_b32 v{vMAXW}, v{vM+qt} offset:{qt*16*XS}")
    e("s_waitcnt lgkmcnt(0)")
    e("s_barrier")
    for qt in range(nq):
        for j in range(8):
            e(f"ds_read_b128 v[{vT+4*j}:{vT+4*j+3}], v{vMAXR} offset:{qt*16*XS+16*j}")
        e("s_waitcnt lgkmcnt(0)")
        e(f"v_max3_f32 v{vM+qt}, v{vT}, v{vT+1}, v{vT+2}")
        for j in range(3, 31, 2):
            e(f"v_max3_f32 v{vM+qt}, v{vM+qt}, v{vT+j}, v{vT+j+1}")
        e(f"v_max_f32 v{vM+qt}, v{vM+qt}, v{vT+31}")
    e(f"s_cmp_ge_u32 s{sW}, s{sCNT}")
    e(f"s_cbranch_scc1 L_idle2_{tag}")
    for qt in range(nq):
        for kt in range(2):
            for i in range(4):
                r = vS + (kt*2+qt)*4 + i
                e(f"v_sub_f32 v{r}, v{r}, v{vM+qt}")
    for qt in range(nq):
        for kt in range(2):
            for i in range(4):
                r = vS + (kt*2+qt)*4 + i
                e(f"v_exp_f32 v{r}, v{r}")
    e("s_nop 0")
    for qt in range(nq):
        a = vS + qt*4; b = vS + (2+qt)*4
        e(f"v_add_f32 v{vL+qt}, v{a}, v{a+1}")
        e(f"v_add_f32 v{vT}, v{a+2}, v{a+3}")
        e(f"v_add_f32 v{vT+1}, v{b}, v{b+1}")
        e(f"v_add_f32 v{vT+2}, v{b+2}, v{b+3}")
        e(f"v_add_f32 v{vL+qt}, v{vL+qt}, v{vT}")
        e(f"v_add_f32 v{vT+1}, v{vT+1}, v{vT+2}")
        e(f"v_add_f32 v{vL+qt}, v{vL+qt}, v{vT+1}")
        p = vP + qt*4
        e(f"v_cvt_pk_bf16_f32 v{p}, v{a}, v{a+1}")
        e(f"v_cvt_pk_bf16_f32 v{p+1}, v{a+2}, v{a+3}")
        e(f"v_cvt_pk_bf16_f32 v{p+2}, v{b}, v{b+1}")
        e(f"v_cvt_pk_bf16_f32 v{p+3}, v{b+2}, v{b+3}")
        e(f"ds_write_b128 v{vPW}, v[{p}:{p+3}] offset:{qt*1024}")
    e(f"s_branch L_sumw_{tag}")
    lab(f"L_idle2_{tag}")
    for qt in range(nq):
        e(f"v_mov_b32 v{vL+qt}, 0")
    lab(f"L_sumw_{tag}")
    for qt in range(nq):
        e(f"ds_write_b32 v{vMAXW}, v{vL+qt} offset:{qt*16*XS + LDS_SUM - LDS_MAX}")
    e("s_waitcnt vmcnt(0) lgkmcnt(0)")
    stamp(4)
    e("s_barrier")
    e(f"v_lshlrev_b32 v{vT}, 4, v{vLANE}")
    e(f"v_add_u32 v{vT}, {LDS_P}, v{vT}")
    for w2 in range(NW):
        for qt in range(nq):
            r = vPA + (w2*2+qt)*4
            e(f"ds_read_b128 v[{r}:{r+3}], v{vT} offset:{w2*2048 + qt*1024}")
        r = vVA + w2*4
        e(f"ds_read_b64_tr_b16 v[{r}:{r+1}], v{vTR} offset:{w2*8192}")
        e(f"ds_read_b64_tr_b16 v[{r+2}:{r+3}], v{vTR} offset:{w2*8192+4096}")
    per = nq + 2; tot = NW*per
    for w2 in range(NW):
        if w2 > 0:
            e(f"s_cmp_le_u32 s{sCNT}, {w2}")
            e(f"s_cbranch_scc1 L_pvdone_{tag}")
        e(f"s_waitcnt lgkmcnt({min(15, tot - (w2+1)*per)})")
        for qt in range(nq):
            d = vS + qt*4; a = vVA + w2*4; b = vPA + (w2*2+qt)*4
            c = "0" if w2 == 0 else f"v[{d}:{d+3}]"
            e(f"v_mfma_f32_16x16x32_bf16 v[{d}:{d+3}], v[{a}:{a+3}], v[{b}:{b+3}], {c}")
    lab(f"L_pvdone_{tag}")
    e("s_waitcnt lgkmcnt(0)")
    e(f"s_cmp_lg_u32 s{sW}, 0")
    e(f"s_cbranch_scc1 L_nosum_{tag}")
    for qt in range(nq):
        for j in range(8):
            e(f"ds_read_b128 v[{vT+4*j}:{vT+4*j+3}], v{vMAXR} offset:{qt*16*XS+16*j + LDS_SUM - LDS_MAX}")
        e("s_waitcnt lgkmcnt(0)")
        st = 1
        while st < 32:
            for j in range(0, 32, 2*st):
                e(f"v_add_f32 v{vT+j}, v{vT+j}, v{vT+j+st}")
            st *= 2
        e(f"v_mov_b32 v{vL+qt}, v{vT}")
    lab(f"L_nosum_{tag}")
    e("s_nop 7")
    e(f"s_mul_i32 s56, s{sHKV}, {NSLOT}")
    e(f"s_add_u32 s56, s56, s{sSLOT}")
    e(f"s_lshl_b32 s56, s56, 2")
    if wide:
        e(f"v_lshrrev_b32 v{vT}, 2, v{vN}")
        e(f"v_mul_u32_u24 v{vT}, {8*NSLOT*4}, v{vT}")
        e(f"v_and_b32 v{vT+1}, 3, v{vN}")
        e(f"v_add3_u32 v{vT}, v{vT}, v{vT+1}, s56")
    else:
        e(f"s_mul_i32 s57, s{sB}, {8*NSLOT*4}")
        e("s_add_u32 s56, s56, s57")
        e(f"v_add_u32 v{vT}, s56, v{vN}")
    e(f"v_lshlrev_b32 v{vOUT}, 9, v{vT}")
    e(f"s_lshl_b32 s57, s{sW}, 6")
    e(f"v_lshl_add_u32 v{vT+1}, v{vG}, 4, s57")
    e(f"v_add_u32 v{vOUT}, v{vOUT}, v{vT+1}")
    e(f"v_lshlrev_b32 v{vT+2}, 3, v{vT}")
    e(f"v_add_u32 v{vT+2}, {WS_O}, v{vT+2}")
    e("s_mov_b32 s58, 0")
    e(f"s_mov_b32 s59, {4*8*NSLOT*4*512}")
    e(f"s_mov_b32 s60, {4*8*NSLOT*4*8}")
    if not wide:
        e(f"v_cmp_gt_u32 vcc, 4, v{vN}")
        e("s_and_saveexec_b64 s[62:63], vcc")
    for qt in range(nq):
        d = vS + qt*4
        e(f"buffer_store_dwordx4 v[{d}:{d+3}], v{vOUT}, s[{sWS}:{sWS+3}], s{58+qt} offen sc1")
    e(f"v_cmp_gt_u32 vcc, 16, v0")
    e("s_and_saveexec_b64 s[64:65], vcc")
    e(f"s_cbranch_execz L_noml_{tag}")
    for qt in range(nq):
        e(f"v_mov_b32 v{vML}, v{vM+qt}")
        e(f"v_mov_b32 v{vML+1}, v{vL+qt}")
        so = "s58" if qt == 0 else "s60"
        e(f"buffer_store_dwordx2 v[{vML}:{vML+1}], v{vT+2}, s[{sWS}:{sWS+3}], {so} offen sc1")
        e("s_nop 1")
    lab(f"L_noml_{tag}")
    e("s_mov_b64 exec, -1")

hdr = ["; paged KV radix attention decode, generated by gen5.py",
       f"; @launch grid=({NWG},1,1) block=(512,1,1) lds={LDS_TOTAL}"]
L.append('.amdgcn_target "amdgcn-amd-amdhsa--gfx950"')
L.append(".text")
L.append(f".globl {NAME}_kernel")
L.append(".p2align 8")
L.append(f".type {NAME}_kernel,@function")
lab(f"{NAME}_kernel")
stamp(0)
e("s_load_dwordx16 s[4:19], s[0:1], 0")
e(f"s_cmp_ge_u32 s2, {NWG}")
e("s_cbranch_scc1 L_exit")
e(f"v_and_b32 v{vLANE}, 63, v0")
e(f"v_lshrrev_b32 v{vG}, 6, v0")
e(f"v_lshlrev_b32 v{vL4}, 2, v{vLANE}")
e(f"v_readfirstlane_b32 s{sW}, v{vG}")
e(f"v_and_b32 v{vSSO}, 31, v{vLANE}")
e(f"v_lshlrev_b32 v{vSSO}, 3, v{vSSO}")
e(f"v_lshrrev_b32 v{vBTO}, 5, v{vLANE}")
e(f"v_lshl_add_u32 v{vBTO}, v{vBTO}, 9, v{vSSO}")
e(f"v_lshrrev_b32 v{vG}, 4, v{vLANE}")
e(f"v_and_b32 v{vN}, 15, v{vLANE}")
if ROT == 99:
    e(f"s_lshr_b32 s56, s2, 3")
    e(f"s_add_u32 s56, s2, s56")
else:
    e(f"s_add_u32 s56, s2, {ROT}")
e(f"s_and_b32 s{sHKV}, s56, 7")
e(f"s_lshr_b32 s{sITEM}, s2, 3")
e(f"s_mov_b32 s{sBT+2}, {8*128*4}")
e(f"s_mov_b32 s{sBT+3}, 0x00020000")
e(f"s_mov_b32 s{sCT+2}, 32")
e(f"s_mov_b32 s{sCT+3}, 0x00020000")
e("s_waitcnt lgkmcnt(0)")
stamp(1)
e(f"s_mov_b32 s{sCT}, s12")
e(f"s_and_b32 s{sCT+1}, s13, 0xffff")
e(f"s_mov_b32 s{sBT}, s10")
e(f"s_and_b32 s{sBT+1}, s11, 0xffff")
def issue_bt():
    e(f"s_cmp_lt_u32 s{sITEM}, {NSH}")
    e("s_cselect_b32 s56, 0, 256")
    e(f"buffer_load_dword v{vCTXV}, v{vL4}, s[{sCT}:{sCT+3}], 0 offen")
    e(f"buffer_load_dwordx2 v[{vSS}:{vSS+1}], v{vSSO}, s[{sBT}:{sBT+3}], 0 offen")
    for j in range(4):
        e(f"buffer_load_dwordx2 v[{vR+2*j}:{vR+2*j+1}], v{vBTO}, s[{sBT}:{sBT+3}], s56 offen offset:{j*1024}")
issue_bt()
srd(sK, 6, KV_BYTES)
srd(sV, 8, KV_BYTES)
srd(sQ, 4, 8*32*128*2)
srd(sOUT, 14, 8*32*128*2)
srd(sDBG, 16, 256)
srd(sWS, 18, WS_O + WS_ML + 65536)
e(f"s_mov_b64 s[{sM8}:{sM8+1}], 0xff")
e(f"s_lshl_b32 s56, s{sHKV}, 8")
e(f"v_lshlrev_b32 v{vKOFF}, 11, v{vN}")
e(f"v_lshl_add_u32 v{vKOFF}, v{vG}, 4, v{vKOFF}")
e(f"v_add_u32 v{vKOFF}, s56, v{vKOFF}")
for odd in range(2):
    vo = vVOFF1 if odd else vVOFF0
    e(f"v_add_u32 v{vT}, {4*odd}, v{vG}")
    e(f"v_lshrrev_b32 v{vT+1}, 1, v{vN}")
    e(f"v_xor_b32 v{vT+1}, v{vT+1}, v{vT}")
    e(f"v_lshlrev_b32 v{vT+1}, 1, v{vT+1}")
    e(f"v_and_b32 v{vT+2}, 1, v{vN}")
    e(f"v_or_b32 v{vT+1}, v{vT+1}, v{vT+2}")
    e(f"v_lshlrev_b32 v{vT+1}, 4, v{vT+1}")
    e(f"v_lshl_add_u32 v{vo}, v{vT}, 11, v{vT+1}")
    e(f"v_add_u32 v{vo}, s56, v{vo}")
e(f"v_mul_u32_u24 v{vMAXR}, {XS}, v{vN}")
e(f"v_add_u32 v{vMAXR}, {LDS_MAX}, v{vMAXR}")
e(f"s_lshl_b32 s57, s{sW}, 4")
e(f"v_lshl_add_u32 v{vMAXW}, v{vG}, 2, s57")
e(f"v_add_u32 v{vMAXW}, v{vMAXW}, v{vMAXR}")
e(f"s_lshl_b32 s57, s{sW}, 11")
e(f"s_add_u32 s57, s57, {LDS_P}")
e(f"v_lshl_add_u32 v{vPW}, v{vLANE}, 4, s57")
e(f"v_lshrrev_b32 v{vT}, 2, v{vN}")
e(f"v_lshl_add_u32 v{vT}, v{vG}, 2, v{vT}")
e(f"v_and_b32 v{vT+1}, 7, v{vT}")
e(f"v_and_b32 v{vT+2}, 3, v{vN}")
e(f"v_lshlrev_b32 v{vT+2}, 3, v{vT+2}")
e(f"v_lshl_add_u32 v{vT+2}, v{vT}, 8, v{vT+2}")
e(f"v_xor_b32 v{vT+3}, s{sW}, v{vT+1}")
e(f"v_lshl_add_u32 v{vTR}, v{vT+3}, 5, v{vT+2}")
e(f"v_mov_b32 v{vMASK}, {f2u(MASKV):#x}")
e(f"s_lshl_b32 s57, s{sHKV}, 10")
e(f"v_lshl_add_u32 v{vQS}, v{vG}, 8, s57")
e("s_branch L_item2")
lab("L_item")
issue_bt()
lab("L_item2")
e(f"s_cmp_lt_u32 s{sITEM}, 2")
e(f"s_cselect_b32 s{sCNT}, 7, 6")
e(f"s_min_u32 s56, s{sITEM}, 2")
e(f"s_mul_i32 s57, s{sITEM}, 6")
e(f"s_add_u32 s{sP0}, s56, s57")
e(f"s_lshl_b32 s{sCOL0}, s{sP0}, 1")
e(f"s_mov_b32 s{sSLOT}, s{sITEM}")
e(f"v_lshrrev_b32 v{vT}, 3, v{vSSO}")
e(f"v_subrev_u32 v{vT}, s{sP0}, v{vT}")
e(f"v_cmp_gt_u32 s[{sCHK}:{sCHK+1}], s{sCNT}, v{vT}")
e(f"s_add_u32 s60, s{sP0}, s{sW}")
e("s_waitcnt vmcnt(0)")
stamp(2)
e(f"s_cmp_ge_u32 s{sITEM}, {NSH}")
e("s_cbranch_scc1 L_ptype")
e(f"v_readlane_b32 s{sPH0}, v{vSS}, s60")
e(f"v_readlane_b32 s{sPH1}, v{vSS+1}, s60")
e(f"v_cmp_ne_u32 vcc, v{vR}, v{vSS}")
for j in range(4):
    for h in range(2):
        if j == 0 and h == 0: continue
        e(f"v_cmp_ne_u32 s[62:63], v{vR+2*j+h}, v{vSS+h}")
        e("s_or_b64 vcc, vcc, s[62:63]")
e(f"s_and_b64 vcc, vcc, s[{sCHK}:{sCHK+1}]")
e(f"s_lshl_b32 s{sPH0}, s{sPH0}, 15")
e(f"s_lshl_b32 s{sPH1}, s{sPH1}, 15")
e("s_cbranch_vccnz L_fallback")
body(True)
e("s_branch L_tail")
lab("L_fallback")
decode_common()
e(f"s_mov_b32 s{sB}, 0")
e(f"s_mov_b32 s{sLIM}, 128")
e("s_branch L_narrow")
lab("L_ptype")
decode_common()
e(f"s_cmp_ge_u32 s{sITEM}, s{sNIT}")
e("s_cbranch_scc1 L_end")
e(f"s_sub_u32 s56, s{sITEM}, {NSH}")
e(f"v_cmp_lt_u32 vcc, s56, v{dIN}")
e(f"v_sub_u32 v{dIN}, v{dIN}, v{vNC}")
e(f"v_cvt_f32_u32 v{dA}, v{vNC}")
e(f"v_cvt_f32_u32 v{dBt}, v{dNP}")
e(f"v_rcp_f32 v{dA}, v{dA}")
e(f"s_ff1_i32_b64 s{sB}, vcc")
e(f"v_mov_b32 v{vT+21}, 0xbc23d70a")
e(f"v_fmac_f32 v{vT+21}, v{dA}, v{dBt}")
e(f"v_ceil_f32 v{vT+21}, v{vT+21}")
e(f"v_cvt_u32_f32 v{vT+21}, v{vT+21}")
e(f"v_readlane_b32 s57, v{dIN}, s{sB}")
e(f"v_readlane_b32 s59, v{dNP}, s{sB}")
e(f"v_readlane_b32 s{sLIM}, v{dNB}, s{sB}")
e(f"v_readlane_b32 s58, v{vT+21}, s{sB}")
e("s_nop 3")
e("s_sub_u32 s56, s56, s57")
e(f"s_mul_i32 s{sP0}, s56, s58")
e(f"s_sub_u32 s59, s59, s{sP0}")
e(f"s_min_u32 s{sCNT}, s58, s59")
e(f"s_add_u32 s{sSLOT}, s56, {NSH}")
e(f"s_lshl_b32 s{sCOL0}, s{sP0}, 1")
e(f"s_add_u32 s{sCOL0}, s{sCOL0}, 64")
lab("L_narrow")
e(f"s_and_b32 s56, s{sB}, 1")
e("s_lshl_b32 s56, s56, 5")
e(f"s_add_u32 s56, s56, s{sP0}")
e(f"s_add_u32 s56, s56, s{sW}")
e("s_and_b32 s56, s56, 63")
e(f"v_readlane_b32 s{sPH0}, v{vR}, s56")
e(f"v_readlane_b32 s{sPH1}, v{vR+1}, s56")
for j in range(1, 4):
    e(f"v_readlane_b32 s{58+2*j}, v{vR+2*j}, s56")
    e(f"v_readlane_b32 s{59+2*j}, v{vR+2*j+1}, s56")
e(f"v_readlane_b32 s{sCTXB}, v{vCTXV}, s{sB}")
e(f"s_lshr_b32 s57, s{sB}, 1")
e(f"s_lshl_b32 s58, s{sW}, 1")
e(f"s_add_u32 s58, s58, s{sCOL0}")
e("s_add_u32 s58, s58, 1")
e("s_nop 1")
for j in range(1, 4):
    e(f"s_cmp_eq_u32 s57, {j}")
    e(f"s_cselect_b32 s{sPH0}, s{58+2*j}, s{sPH0}")
    e(f"s_cselect_b32 s{sPH1}, s{59+2*j}, s{sPH1}")
e(f"s_cmp_lt_u32 s58, s{sLIM}")
e(f"s_cselect_b32 s{sPH1}, s{sPH1}, s{sPH0}")
e(f"s_lshl_b32 s{sPH0}, s{sPH0}, 15")
e(f"s_lshl_b32 s{sPH1}, s{sPH1}, 15")
body(False)
e(f"s_cmp_ge_u32 s{sITEM}, {NSH}")
e("s_cbranch_scc1 L_tail")
e(f"s_add_u32 s{sB}, s{sB}, 1")
e(f"s_cmp_ge_u32 s{sB}, 8")
e("s_cbranch_scc1 L_tail")
e("s_waitcnt vmcnt(0) lgkmcnt(0)")
e("s_barrier")
e("s_branch L_narrow")
lab("L_tail")
e("s_waitcnt vmcnt(0) lgkmcnt(0)")
stamp(5)
e("s_barrier")
e(f"s_cmp_lg_u32 s{sW}, 0")
e("s_cbranch_scc1 L_tail_wait")
e(f"s_cmp_ge_u32 s{sITEM}, {NSH}")
e("s_cselect_b32 s57, 1, 8")
e(f"s_cselect_b32 s58, s{sB}, 0")
e(f"v_lshlrev_b32 v{TT}, 3, v{vLANE}")
e(f"v_add_u32 v{TT}, s{sHKV}, v{TT}")
e(f"v_lshlrev_b32 v{TT}, 2, v{TT}")
e(f"v_mov_b32 v{TT+1}, 1")
e(f"v_subrev_u32 v{TT+2}, s58, v{vLANE}")
e(f"v_cmp_gt_u32 vcc, s57, v{TT+2}")
e("s_and_saveexec_b64 s[62:63], vcc")
e(f"buffer_atomic_add v{TT+1}, v{TT}, s[{sDBG}:{sDBG+3}], 0 offen sc0")
e("s_mov_b64 exec, -1")
combine_init()
e("s_mov_b64 exec, s[62:63]")
e("s_and_b64 exec, exec, vcc")
e("s_waitcnt vmcnt(0)")
e(f"v_cmp_eq_u32 vcc, v{vEXP}, v{TT+1}")
e("s_mov_b64 exec, -1")
e("s_nop 1")
e(f"v_mov_b32 v{TT}, {LDS_FLAG}")
e(f"v_mov_b32 v{TT+1}, vcc_lo")
e(f"ds_write_b32 v{TT}, v{TT+1}")
e("s_waitcnt lgkmcnt(0)")
e("s_branch L_tail_wait2")
lab("L_tail_wait")
combine_init()
lab("L_tail_wait2")
stamp(6)
e("s_barrier")
e(f"v_mov_b32 v{TT}, {LDS_FLAG}")
e(f"ds_read_b32 v{TT+1}, v{TT}")
e("s_waitcnt lgkmcnt(0)")
e(f"v_readfirstlane_b32 s61, v{TT+1}")
e("s_nop 3")
combine_code()
lab("L_comb_done")
e(f"s_add_u32 s{sITEM}, s{sITEM}, 32")
e(f"s_cmp_ge_u32 s{sITEM}, s{sNIT}")
e("s_cbranch_scc1 L_end")
e("s_waitcnt vmcnt(0) lgkmcnt(0)")
e("s_barrier")
e("s_branch L_item")
lab("L_end")
stamp(7)
stamp_flush(8)
lab("L_exit")
e("s_endpgm")
L.append('.section .rodata,"a"')
L.append(".p2align 6")
L.append(f".amdhsa_kernel {NAME}_kernel")
L.append(f"  .amdhsa_next_free_vgpr {NVGPR}")
L.append("  .amdhsa_next_free_sgpr 102")
L.append(f"  .amdhsa_accum_offset {NVGPR}")
L.append("  .amdhsa_group_segment_fixed_size 0")
L.append("  .amdhsa_kernarg_size 64")
L.append("  .amdhsa_user_sgpr_count 2")
L.append("  .amdhsa_user_sgpr_kernarg_segment_ptr 1")
L.append("  .amdhsa_system_sgpr_workgroup_id_x 1")
L.append(".end_amdhsa_kernel")
out = "\n".join(hdr + L) + "\n"
open(OUTP or f"cdna_kernels/{NAME}.s", "w").write(out)
print("ok", len(L), "lds", LDS_TOTAL)
```

```python
import sys, struct
STAMP = False; NT = ' nt'; OUTP = None; N0 = 29; SLOWC = 1; NSHF = 5; NSHS = 7
for a in sys.argv[1:]:
    if a == 'stamp': STAMP = True
    if a.startswith('o='): OUTP = a[2:]
    if a.startswith('slowc='): SLOWC = int(a[6:])
    if a.startswith('n0='): N0 = int(a[3:])
    if a.startswith('nshf='): NSHF = int(a[5:])
    if a.startswith('nshs='): NSHS = int(a[5:])
NAME = "standalone__paged_block_table_kv_radixattention__sampling"
L = []
def e(s=""): L.append("    " + s)
def lab(s): L.append(s + ":")
def f2u(f): return struct.unpack('<I', struct.pack('<f', f))[0]

NW = 8
NWG = 256
KV_BYTES = 576*32768
NSHMIN = min(NSHF, NSHS)
NSLOT = (max(NSHF, NSHS) + 7) | 1
N1 = (256 - 6*N0)//2
WS_O = 64*NSLOT*4*512
WS_ML = 64*NSLOT*4*8
LDS_P = NW*8192
LDS_MAX = LDS_P + NW*2048
XS = 144
LDS_SUM = LDS_MAX + 32*XS
LDS_FLAG = LDS_SUM + 32*XS
LDS_Q = LDS_FLAG + 64
LDS_TOTAL = LDS_Q + 8192
SCALE = (128 ** -0.5) * 1.4426950408889634
MASKV = -1e9 * 1.4426950408889634

sQ, sK, sV, sBT, sOUT, sDBG, sWS, sCT = 20, 24, 28, 32, 36, 40, 44, 84
sHKV, sITEM, sB, sW, sCNT, sCOL, sSLOT, sNIT = 48, 49, 50, 51, 52, 53, 54, 55
sPH0, sPH1 = 82, 83
sP0, sLIM, sCTXB, sNSH = 88, 89, 90, 91
sM8, sCHK = 92, 94
sNPRIV, sNWGH, sHALF, sKK, sMAG, sPRES = 96, 97, 98, 99, 100, 101
sSTM = 4
sPW = 6
sG0, sG1, sSZ, sC0, sHM, sBF, sWB, sWR = 7, 8, 9, 10, 11, 3, 0, 1
vLANE, vG, vN = 1, 2, 3
vKOFF, vVOFF0, vVOFF1, vEXP = 4, 5, 6, 7
vMAXW, vMAXR, vPW, vTR, vPOS, vOUT, vMASK, vQS = 8, 9, 10, 11, 12, 13, 14, 15
vK, vQ, vS = 16, 48, 80
vCTX, vM, vL = 96, 98, 100
vML = 102
vP = 104
vT = 112
vPA = 144
vVA = 208
vR, vSS, vCTXV, vNC, vBTO, vL4, vSSO, vMAG = 240, 248, 250, 251, 252, 253, 254, 255
NVGPR = 256

def stamp(i):
    if STAMP: e(f"s_memrealtime s[{66+2*i}:{67+2*i}]")
def stamp_flush(n):
    if not STAMP: return
    e("s_waitcnt lgkmcnt(0)")
    e(f"s_cmp_lg_u32 s{sW}, 0")
    e("s_cbranch_scc1 L_nostamp")
    e("s_lshl_b32 s56, s2, 6")
    e(f"s_add_u32 s56, s56, {WS_O + WS_ML}")
    e("v_mov_b32 v60, s56")
    for i in range(n):
        e(f"v_mov_b32 v61, s{66+2*i}")
        e(f"buffer_store_dword v61, v60, s[{sWS}:{sWS+3}], 0 offen offset:{4*i}")
        e("s_nop 1")
    lab("L_nostamp")

def srd(base, lo, nbytes):
    e(f"s_mov_b32 s{base}, s{lo}")
    e(f"s_and_b32 s{base+1}, s{lo+1}, 0xffff")
    e(f"s_mov_b32 s{base+2}, {nbytes}")
    e(f"s_mov_b32 s{base+3}, 0x00020000")

CM = [16, 16 + 2*NSLOT]
CO = [16 + 4*NSLOT, 16 + 8*NSLOT]
CT = 16 + 12*NSLOT
assert CT + 18 <= 240
TT = CT + 5
NB1 = 9
def combine_init():
    for hp in range(2):
        for c in range(NSHMIN, NSLOT):
            e(f"v_mov_b32 v{CM[hp]+2*c}, 0xff800000")
            e(f"v_mov_b32 v{CM[hp]+2*c+1}, 0")
            for k in range(4): e(f"v_mov_b32 v{CO[hp]+4*c+k}, 0")
    e(f"v_lshrrev_b32 v{CT}, 5, v{vLANE}")
    e(f"v_and_b32 v{CT+1}, 31, v{vLANE}")
    e(f"v_lshlrev_b32 v{CT+2}, 4, v{CT}")
    e(f"v_lshlrev_b32 v{CT+3}, 4, v{CT+1}")
    e(f"v_lshl_add_u32 v{CT+3}, v{CT}, 10, v{CT+3}")
    e(f"v_lshlrev_b32 v{CT+4}, 3, v{CT+1}")
    e(f"v_lshl_add_u32 v{CT+4}, v{CT}, 9, v{CT+4}")
    for hp in range(2):
        e(f"s_add_u32 s{10+hp}, s{sW}, {4*hp}")
        e(f"s_and_b32 s{10+hp}, s{10+hp}, 7")
        e(f"v_readlane_b32 s{12+hp}, v{vNC}, s{10+hp}")
        e(f"s_lshl_b32 s56, s{10+hp}, 3")
        e(f"s_add_u32 s56, s56, s{sHKV}")
        e(f"s_mul_i32 s{14+hp}, s56, {NSLOT*2048}")
        e(f"s_mul_i32 s{16+hp}, s56, {NSLOT*32}")
        e(f"s_add_u32 s{16+hp}, s{16+hp}, {WS_O}")
        e(f"s_lshl_b32 s{18+hp}, s56, 10")
        e(f"s_add_u32 s{12+hp}, s{12+hp}, s{sNSH}")
def combine_code():
    for hp in range(2):
        e(f"s_bitcmp1_b32 s61, s{10+hp}")
        e(f"s_cbranch_scc0 L_comb_ld{hp}")
        for c in range(NSLOT):
            if c >= NSHMIN:
                e(f"s_cmp_le_u32 s{12+hp}, {c}")
                e(f"s_cbranch_scc1 L_comb_ld{hp}")
            r = CM[hp] + 2*c
            e(f"buffer_load_dwordx2 v[{r}:{r+1}], v{CT+2}, s[{sWS}:{sWS+3}], s{16+hp} offen offset:{c*32+hp*8} sc1")
            r = CO[hp] + 4*c
            off = c*2048 + hp*512
            if off >= 4096:
                e(f"s_add_u32 s56, s{14+hp}, {off & ~4095}")
                so = "s56"
            else: so = f"s{14+hp}"
            e(f"buffer_load_dwordx4 v[{r}:{r+3}], v{CT+3}, s[{sWS}:{sWS+3}], {so} offen offset:{off & 4095} sc1")
        lab(f"L_comb_ld{hp}")
    e("s_waitcnt vmcnt(0)")
    for hp in range(2):
        e(f"s_bitcmp1_b32 s61, s{10+hp}")
        e(f"s_cbranch_scc0 L_comb_c{hp}")
        m = lambda c: CM[hp] + 2*c
        o = lambda c: CO[hp] + 4*c
        M, Ls, R, A = CT+6, CT+7, CT+8, CT+10
        e(f"v_max3_f32 v{M}, v{m(0)}, v{m(1)}, v{m(2)}")
        for c in range(3, NSLOT, 2):
            e(f"v_max3_f32 v{M}, v{M}, v{m(c)}, v{m(c+1)}")
        def blk(c0, c1):
            for c in range(c0, c1): e(f"v_sub_f32 v{m(c)}, v{m(c)}, v{M}")
            for c in range(c0, c1): e(f"v_exp_f32 v{m(c)}, v{m(c)}")
            e("s_nop 0")
            for c in range(c0, c1):
                if c == 0:
                    e(f"v_mul_f32 v{Ls}, v{m(c)}, v{m(c)+1}")
                    for k in range(2):
                        e(f"v_pk_mul_f32 v[{A+2*k}:{A+2*k+1}], v[{o(c)+2*k}:{o(c)+2*k+1}], v[{m(c)}:{m(c)+1}] op_sel_hi:[1,0]")
                else:
                    e(f"v_fmac_f32 v{Ls}, v{m(c)}, v{m(c)+1}")
                    for k in range(2):
                        e(f"v_pk_fma_f32 v[{A+2*k}:{A+2*k+1}], v[{o(c)+2*k}:{o(c)+2*k+1}], v[{m(c)}:{m(c)+1}], v[{A+2*k}:{A+2*k+1}] op_sel_hi:[1,0,1]")
        blk(0, NB1)
        c0 = NB1
        while c0 < NSLOT:
            e(f"s_cmp_le_u32 s{12+hp}, {c0}")
            e(f"s_cbranch_scc1 L_comb_f{hp}")
            blk(c0, min(NSLOT, c0 + 2))
            c0 += 2
        lab(f"L_comb_f{hp}")
        e(f"v_rcp_f32 v{R}, v{Ls}")
        e("s_nop 0")
        e(f"v_fma_f32 v{R+1}, -v{Ls}, v{R}, 1.0")
        e(f"v_fmac_f32 v{R}, v{R+1}, v{R}")
        for k in range(2):
            e(f"v_pk_mul_f32 v[{A+2*k}:{A+2*k+1}], v[{A+2*k}:{A+2*k+1}], v[{R}:{R+1}] op_sel_hi:[1,0]")
        e(f"v_cvt_pk_bf16_f32 v{A+4+2*hp}, v{A}, v{A+1}")
        e(f"v_cvt_pk_bf16_f32 v{A+5+2*hp}, v{A+2}, v{A+3}")
        e(f"buffer_store_dwordx2 v[{A+4+2*hp}:{A+5+2*hp}], v{CT+4}, s[{sOUT}:{sOUT+3}], s{18+hp} offen offset:{hp*256}")
        lab(f"L_comb_c{hp}")

dNB, dNP, dIN, dA, dBt, dE, dEN, dC = vT+16, vT+17, vT+18, vT+19, vT+20, vT+21, vT+22, vT+23
def decode_a():
    e(f"v_add_u32 v{dA}, 15, v{vCTXV}")
    e(f"v_add_u32 v{dBt}, -1, v{vCTXV}")
    e(f"v_cmp_gt_u32 vcc, 0x800, v{dBt}")
    e(f"v_lshrrev_b32 v{dA}, 4, v{dA}")
    e(f"v_mov_b32 v{dNB}, 0x80")
    e("s_nop 0")
    e(f"v_cndmask_b32 v{dNB}, v{dNB}, v{dA}, vcc")
    e(f"v_subrev_u32 v{dA}, 63, v{dNB}")
    e(f"v_max_i32 v{dA}, 0, v{dA}")
    e(f"v_lshrrev_b32 v{dA}, 1, v{dA}")
    e(f"v_cndmask_b32 v{dNP}, 0, v{dA}, s[{sM8}:{sM8+1}]")
    e(f"v_cndmask_b32 v{dIN}, 0, v{dA}, s[{sM8}:{sM8+1}]")
    e(f"v_cmp_gt_u32 s[58:59], 3, v{dA}")
    e("s_nop 0")
    for sh in (1, 2, 4):
        e(f"v_add_u32_dpp v{dIN}, v{dIN}, v{dIN} row_shr:{sh} row_mask:0xf bank_mask:0xf bound_ctrl:0")
        e("s_nop 1")
    e(f"v_readlane_b32 s{sG0}, v{dIN}, 3")
    e(f"v_readlane_b32 s{sG1}, v{dIN}, 7")
    e(f"v_cmp_lt_u32 vcc, 3, v{vLANE}")
    e("s_nop 2")
    e("s_and_b32 s58, s58, 0x7e")
    e(f"s_cselect_b32 s57, s{sG0}, 0")
    e(f"s_cselect_b32 s{sG0}, s{sG0}, s{sG1}")
    e(f"s_cselect_b32 s{sHM}, 15, 0xff")
    e(f"s_sub_u32 s{sG1}, s{sG1}, s{sG0}")
    e(f"v_mov_b32 v{dA}, s57")
    e(f"v_cndmask_b32 v{dA}, 0, v{dA}, vcc")
    e(f"v_add3_u32 v{dBt}, s{sG0}, v{vLANE}, 5")
    e(f"v_add3_u32 v{dC}, s{sG1}, v{vLANE}, 5")
    e(f"v_mul_u32_u24 v{dBt}, v{dBt}, v{vMAG}")
    e(f"v_mul_u32_u24 v{dC}, v{dC}, v{vMAG}")
    e(f"v_lshrrev_b32 v{dBt}, 18, v{dBt}")
    e(f"v_lshrrev_b32 v{dC}, 18, v{dC}")
    e(f"v_add_u32 v{dC}, v{dC}, v{dBt}")
    e(f"v_cmp_ge_u32 vcc, s{sNPRIV}, v{dC}")
    e(f"v_sub_u32 v{dEN}, v{dIN}, v{dA}")
    e(f"v_sub_u32 v{dE}, v{dEN}, v{dNP}")
    e("s_or_b32 s56, vcc_lo, 4")
    e("s_ff1_i32_b32 s56, s56")
    e(f"v_readlane_b32 s{sC0}, v{dBt}, s56")
    e(f"v_readlane_b32 s{sNIT}, v{dC}, s56")
    e(f"v_readlane_b32 s{sMAG}, v{vMAG}, s56")
    e(f"s_add_u32 s{sSZ}, s56, 6")
    e("s_nop 2")
    e(f"s_add_u32 s{sNIT}, s{sNIT}, s{sNSH}")
def decode_b():
    e(f"v_mul_u32_u24 v{dA}, s{sMAG}, v{dE}")
    e(f"v_add_u32 v{dBt}, -1, v{dEN}")
    e(f"v_max_i32 v{dBt}, 0, v{dBt}")
    e(f"v_mul_u32_u24 v{dBt}, s{sMAG}, v{dBt}")
    e(f"v_lshrrev_b32 v{dA}, 18, v{dA}")
    e(f"v_lshrrev_b32 v{dBt}, 18, v{dBt}")
    e(f"v_cmp_lt_u32 vcc, 0, v{dNP}")
    e(f"v_sub_u32 v{dC}, v{dBt}, v{dA}")
    e(f"v_add_u32 v{dC}, 1, v{dC}")
    e(f"v_cndmask_b32 v{vNC}, 0, v{dC}, vcc")
    e(f"v_add3_u32 v{vEXP}, s{sNSH}, v{vNC}, -1")

def body(wide):
    nq = 2 if wide else 1
    tag = "W" if wide else "N"
    QA = vT + 24
    if not wide:
        e(f"s_cmp_ge_u32 s{sW}, 4")
        e("s_cbranch_scc1 L_noq")
    e(f"s_and_b32 s56, s{sW}, 3")
    e("s_lshl_b32 s56, s56, 2")
    e(f"v_add_u32 v{vT+30}, s56, v{vG}")
    e(f"v_xor_b32 v{vT+30}, v{vT+30}, v{vN}")
    e(f"v_lshl_add_u32 v{vT+30}, v{vT+30}, 4, v{vQS}")
    if wide:
        e(f"s_lshl_b32 s56, s{sW}, 13")
    else:
        e(f"s_sub_u32 s56, s{sW}, s{sBF}")
        e("s_and_b32 s56, s56, 3")
        e(f"s_add_u32 s56, s56, s{sBF}")
        e("s_min_u32 s56, s56, 7")
        e(f"s_lshl_b32 s56, s56, 13")
    e(f"s_lshl_b32 s57, s{sW}, 10")
    e(f"s_add_u32 m0, s57, {LDS_Q}")
    e("s_nop 0")
    e(f"buffer_load_dwordx4 v{vT+30}, s[{sQ}:{sQ+3}], s56 offen lds")
    if not wide: lab("L_noq")
    e(f"s_cmp_ge_u32 s{sW}, s{sCNT}")
    e(f"s_cbranch_scc1 L_nok_{tag}")
    for kt in range(2):
        for s in range(4):
            r = vK + kt*16 + s*4
            e(f"buffer_load_dwordx4 v[{r}:{r+3}], v{vKOFF}, s[{sK}:{sK+3}], s{sPH0+kt} offen offset:{s*64}{NT}")
    lab(f"L_nok_{tag}")
    if wide:
        decode_a(); decode_b()
        e(f"s_mov_b32 s{sPRES}, 0xff")
        e(f"s_mul_i32 s56, s{sHKV}, {NSLOT}")
        e(f"s_add_u32 s56, s56, s{sSLOT}")
        e(f"s_lshl_b32 s56, s56, 2")
        e(f"v_lshrrev_b32 v{vT}, 2, v{vN}")
        e(f"v_mul_u32_u24 v{vT}, {8*NSLOT*4}, v{vT}")
        e(f"v_and_b32 v{vT+1}, 3, v{vN}")
        e(f"v_add3_u32 v{vT}, v{vT}, v{vT+1}, s56")
    else:
        e(f"s_cmp_lt_u32 s{sITEM}, s{sNSH}")
        e("s_cbranch_scc1 L_fbslot")
        decode_b()
        e(f"v_cmp_ge_u32 vcc, s{sKK}, v{dA}")
        e(f"v_cmp_le_u32 s[56:57], s{sKK}, v{dBt}")
        e(f"v_cmp_lt_u32 s[58:59], 0, v{dNP}")
        e(f"s_add_u32 s60, s{sKK}, s{sNSH}")
        e(f"v_sub_u32 v{dA}, s60, v{dA}")
        e("s_and_b32 s56, s56, vcc_lo")
        e("s_and_b32 s56, s56, s58")
        e(f"s_and_b32 s{sPRES}, s56, s{sHM}")
        e(f"s_mov_b32 s62, s{sPRES}")
        e("s_branch L_slotdone")
        lab("L_fbslot")
        e(f"v_mov_b32 v{dA}, s{sITEM}")
        e(f"s_mov_b32 s{sPRES}, 0xff")
        e(f"s_lshl_b32 s62, 1, s{sB}")
        lab("L_slotdone")
        e(f"s_mul_i32 s56, s{sHKV}, {NSLOT}")
        e(f"v_mul_u32_u24 v{dBt}, {8*NSLOT}, v{vLANE}")
        e(f"v_add3_u32 v{dBt}, v{dBt}, v{dA}, s56")
        e(f"v_lshlrev_b32 v{dBt}, 2, v{dBt}")
        e("s_mov_b32 s63, 0")
        e(f"v_lshrrev_b32 v{vT+28}, 2, v{vN}")
        e(f"v_subrev_u32 v{vT+28}, s{sBF}, v{vT+28}")
        e(f"v_and_b32 v{vT+28}, 3, v{vT+28}")
        e(f"v_cndmask_b32 v{dBt}, -1, v{dBt}, s[62:63]")
        e(f"v_add_u32 v{vT+28}, s{sBF}, v{vT+28}")
        e(f"v_lshlrev_b32 v{vT+28}, 2, v{vT+28}")
        e(f"ds_bpermute_b32 v{vT}, v{vT+28}, v{dBt}")
        e(f"v_and_b32 v{vT+1}, 3, v{vN}")
        e("s_waitcnt lgkmcnt(0)")
        e(f"v_cmp_le_i32 s[{sSTM}:{sSTM+1}], 0, v{vT}")
        e(f"v_add_u32 v{vT}, v{vT}, v{vT+1}")
    e(f"v_lshlrev_b32 v{vOUT}, 9, v{vT}")
    e(f"s_lshl_b32 s57, s{sW}, 6")
    e(f"v_lshl_add_u32 v{vT+1}, v{vG}, 4, s57")
    e(f"v_add_u32 v{vOUT}, v{vOUT}, v{vT+1}")
    e(f"s_cmp_ge_u32 s{sW}, s{sCNT}")
    e(f"s_cbranch_scc1 L_idle1_{tag}")
    e(f"s_lshl_b32 s57, s{sCOL}, 4")
    e(f"v_lshl_add_u32 v{vPOS}, v{vG}, 2, s57")
    if wide:
        e(f"v_and_b32 v{vT+28}, 12, v{vN}")
        e(f"v_add_u32 v{vT+29}, 16, v{vT+28}")
        e(f"ds_bpermute_b32 v{vCTX}, v{vT+28}, v{vCTXV}")
        e(f"ds_bpermute_b32 v{vCTX+1}, v{vT+29}, v{vCTXV}")
        e(f"v_mov_b32 v{vMASK}, {f2u(MASKV):#x}")
    else:
        e(f"s_and_b32 s56, s{sB}, 3")
        e(f"v_lshrrev_b32 v{vT+28}, 2, v{vN}")
        e(f"v_cmp_eq_u32 vcc, s56, v{vT+28}")
        e(f"v_mov_b32 v{vT+28}, s{sCTXB}")
        e(f"v_mov_b32 v{vT+29}, {f2u(MASKV):#x}")
        e(f"v_mov_b32 v{vCTX}, 0xc0000000")
        e(f"v_mov_b32 v{vMASK}, 0xff800000")
        e(f"v_cndmask_b32 v{vCTX}, v{vCTX}, v{vT+28}, vcc")
        e(f"v_cndmask_b32 v{vMASK}, v{vMASK}, v{vT+29}, vcc")
    for s in range(4):
        e(f"v_add_u32 v{QA+s}, {4*s}, v{vG}")
        e(f"v_xor_b32 v{QA+s}, v{QA+s}, v{vN}")
        e(f"v_lshlrev_b32 v{QA+s}, 4, v{QA+s}")
        e(f"v_lshl_add_u32 v{QA+s}, v{vN}, 8, v{QA+s}")
        e(f"v_add_u32 v{QA+s}, {LDS_Q}, v{QA+s}")
    e("s_waitcnt vmcnt(8)")
    e("s_barrier")
    e(f"s_lshl_b32 s60, s{sW}, 13")
    for i in range(8):
        t = i >> 2; hi = (i >> 1) & 1; odd = i & 1
        e(f"s_add_u32 s59, s{sPH0+t}, {hi*16384}")
        e(f"s_add_u32 m0, s60, {i*1024}")
        e("s_nop 0")
        e(f"buffer_load_dwordx4 v{vVOFF1 if odd else vVOFF0}, s[{sV}:{sV+3}], s59 offen{NT} lds")
    for qt in range(nq):
        for s in range(4):
            r = vQ + qt*16 + s*4
            e(f"ds_read_b128 v[{r}:{r+3}], v{QA+s} offset:{qt*4096}")
    e("s_waitcnt vmcnt(8) lgkmcnt(0)")
    stamp(3)
    for s in range(4):
        for kt in range(2):
            for qt in range(nq):
                d = vS + (kt*2+qt)*4; a = vK + kt*16 + s*4; b = vQ + qt*16 + s*4
                c = "0" if s == 0 else f"v[{d}:{d+3}]"
                e(f"v_mfma_f32_16x16x32_bf16 v[{d}:{d+3}], v[{a}:{a+3}], v[{b}:{b+3}], {c}")
    for qt in range(nq):
        e(f"v_sub_u32 v{vT+qt}, v{vCTX+qt}, v{vPOS}")
    e(f"s_mov_b32 s56, {f2u(SCALE):#x}")
    e("s_nop 7")
    for qt in range(nq):
        for kt in range(2):
            for i in range(4):
                r = vS + (kt*2+qt)*4 + i
                e(f"v_cmp_lt_i32 vcc, {kt*16+i}, v{vT+qt}")
                e(f"v_mul_f32 v{r}, s56, v{r}")
                e("s_nop 0")
                e(f"v_cndmask_b32 v{r}, v{vMASK}, v{r}, vcc")
    for qt in range(nq):
        a = vS + qt*4; b = vS + (2+qt)*4
        e(f"v_max3_f32 v{vM+qt}, v{a}, v{a+1}, v{a+2}")
        e(f"v_max3_f32 v{vM+qt}, v{vM+qt}, v{a+3}, v{b}")
        e(f"v_max3_f32 v{vM+qt}, v{vM+qt}, v{b+1}, v{b+2}")
        e(f"v_max_f32 v{vM+qt}, v{vM+qt}, v{b+3}")
    e(f"s_branch L_maxw_{tag}")
    lab(f"L_idle1_{tag}")
    e("s_waitcnt vmcnt(0)")
    e("s_barrier")
    for qt in range(nq):
        e(f"v_mov_b32 v{vM+qt}, 0xff800000")
    lab(f"L_maxw_{tag}")
    for qt in range(nq):
        e(f"ds_write_b32 v{vMAXW}, v{vM+qt} offset:{qt*16*XS}")
    e("s_waitcnt lgkmcnt(0)")
    e("s_barrier")
    for qt in range(nq):
        for j in range(8):
            e(f"ds_read_b128 v[{vT+4*j}:{vT+4*j+3}], v{vMAXR} offset:{qt*16*XS+16*j}")
        e("s_waitcnt lgkmcnt(0)")
        e(f"v_max3_f32 v{vM+qt}, v{vT}, v{vT+1}, v{vT+2}")
        for j in range(3, 31, 2):
            e(f"v_max3_f32 v{vM+qt}, v{vM+qt}, v{vT+j}, v{vT+j+1}")
        e(f"v_max_f32 v{vM+qt}, v{vM+qt}, v{vT+31}")
    e(f"s_cmp_ge_u32 s{sW}, s{sCNT}")
    e(f"s_cbranch_scc1 L_idle2_{tag}")
    for qt in range(nq):
        for kt in range(2):
            for i in range(4):
                r = vS + (kt*2+qt)*4 + i
                e(f"v_sub_f32 v{r}, v{r}, v{vM+qt}")
    for qt in range(nq):
        for kt in range(2):
            for i in range(4):
                r = vS + (kt*2+qt)*4 + i
                e(f"v_exp_f32 v{r}, v{r}")
    e("s_nop 0")
    for qt in range(nq):
        a = vS + qt*4; b = vS + (2+qt)*4
        e(f"v_add_f32 v{vL+qt}, v{a}, v{a+1}")
        e(f"v_add_f32 v{vT}, v{a+2}, v{a+3}")
        e(f"v_add_f32 v{vT+1}, v{b}, v{b+1}")
        e(f"v_add_f32 v{vT+2}, v{b+2}, v{b+3}")
        e(f"v_add_f32 v{vL+qt}, v{vL+qt}, v{vT}")
        e(f"v_add_f32 v{vT+1}, v{vT+1}, v{vT+2}")
        e(f"v_add_f32 v{vL+qt}, v{vL+qt}, v{vT+1}")
        p = vP + qt*4
        e(f"v_cvt_pk_bf16_f32 v{p}, v{a}, v{a+1}")
        e(f"v_cvt_pk_bf16_f32 v{p+1}, v{a+2}, v{a+3}")
        e(f"v_cvt_pk_bf16_f32 v{p+2}, v{b}, v{b+1}")
        e(f"v_cvt_pk_bf16_f32 v{p+3}, v{b+2}, v{b+3}")
        e(f"ds_write_b128 v{vPW}, v[{p}:{p+3}] offset:{qt*1024}")
    e(f"s_branch L_sumw_{tag}")
    lab(f"L_idle2_{tag}")
    for qt in range(nq):
        e(f"v_mov_b32 v{vL+qt}, 0")
    lab(f"L_sumw_{tag}")
    for qt in range(nq):
        e(f"ds_write_b32 v{vMAXW}, v{vL+qt} offset:{qt*16*XS + LDS_SUM - LDS_MAX}")
    e("s_waitcnt vmcnt(0) lgkmcnt(0)")
    stamp(4)
    e("s_barrier")
    e(f"v_lshlrev_b32 v{vT}, 4, v{vLANE}")
    e(f"v_add_u32 v{vT}, {LDS_P}, v{vT}")
    for w2 in range(NW):
        for qt in range(nq):
            r = vPA + (w2*2+qt)*4
            e(f"ds_read_b128 v[{r}:{r+3}], v{vT} offset:{w2*2048 + qt*1024}")
        r = vVA + w2*4
        e(f"ds_read_b64_tr_b16 v[{r}:{r+1}], v{vTR} offset:{w2*8192}")
        e(f"ds_read_b64_tr_b16 v[{r+2}:{r+3}], v{vTR} offset:{w2*8192+4096}")
    per = nq + 2; tot = NW*per
    for w2 in range(NW):
        if w2 > 0:
            e(f"s_cmp_le_u32 s{sCNT}, {w2}")
            e(f"s_cbranch_scc1 L_pvdone_{tag}")
        e(f"s_waitcnt lgkmcnt({min(15, tot - (w2+1)*per)})")
        for qt in range(nq):
            d = vS + qt*4; a = vVA + w2*4; b = vPA + (w2*2+qt)*4
            c = "0" if w2 == 0 else f"v[{d}:{d+3}]"
            e(f"v_mfma_f32_16x16x32_bf16 v[{d}:{d+3}], v[{a}:{a+3}], v[{b}:{b+3}], {c}")
    lab(f"L_pvdone_{tag}")
    e("s_waitcnt lgkmcnt(0)")
    e(f"s_mov_b32 s59, {4*8*NSLOT*4*512}")
    e(f"s_mov_b32 s60, {4*8*NSLOT*4*8}")
    e(f"s_cmp_lg_u32 s{sW}, 0")
    e(f"s_cbranch_scc1 L_nosum_{tag}")
    for qt in range(nq):
        for j in range(8):
            e(f"ds_read_b128 v[{vT+4*j}:{vT+4*j+3}], v{vMAXR} offset:{qt*16*XS+16*j + LDS_SUM - LDS_MAX}")
        e("s_waitcnt lgkmcnt(0)")
        st = 1
        while st < 32:
            for j in range(0, 32, 2*st):
                e(f"v_add_f32 v{vT+j}, v{vT+j}, v{vT+j+st}")
            st *= 2
        e(f"v_mov_b32 v{vL+qt}, v{vT}")
    lab(f"L_nosum_{tag}")
    e("s_nop 7")
    if not wide:
        e(f"s_mov_b64 exec, s[{sSTM}:{sSTM+1}]")
    for qt in range(nq):
        d = vS + qt*4
        so = "0" if qt == 0 else "s59"
        e(f"buffer_store_dwordx4 v[{d}:{d+3}], v{vOUT}, s[{sWS}:{sWS+3}], {so} offen sc1")
    e(f"v_cmp_gt_u32 vcc, 16, v0")
    e("s_and_saveexec_b64 s[64:65], vcc")
    e(f"s_cbranch_execz L_noml_{tag}")
    e(f"v_lshrrev_b32 v{vT+2}, 6, v{vOUT}")
    e(f"v_add_u32 v{vT+2}, {WS_O}, v{vT+2}")
    for qt in range(nq):
        e(f"v_mov_b32 v{vML}, v{vM+qt}")
        e(f"v_mov_b32 v{vML+1}, v{vL+qt}")
        so = "0" if qt == 0 else "s60"
        e(f"buffer_store_dwordx2 v[{vML}:{vML+1}], v{vT+2}, s[{sWS}:{sWS+3}], {so} offen sc1")
        e("s_nop 1")
    lab(f"L_noml_{tag}")
    e("s_mov_b64 exec, -1")

hdr = ["; paged KV radix attention decode, generated by gen13.py",
       f"; @launch grid=({NWG},1,1) block=(512,1,1) lds={LDS_TOTAL}"]
L.append('.amdgcn_target "amdgcn-amd-amdhsa--gfx950"')
L.append(".text")
L.append(f".globl {NAME}_kernel")
L.append(".p2align 8")
L.append(f".type {NAME}_kernel,@function")
lab(f"{NAME}_kernel")
stamp(0)
e("s_load_dwordx16 s[4:19], s[0:1], 0")
e(f"s_cmp_ge_u32 s2, {NWG}")
e("s_cbranch_scc1 L_exit")
e(f"v_and_b32 v{vLANE}, 63, v0")
e(f"v_lshrrev_b32 v{vG}, 6, v0")
e(f"v_lshlrev_b32 v{vL4}, 2, v{vLANE}")
e(f"v_readfirstlane_b32 s{sW}, v{vG}")
e(f"v_and_b32 v{vSSO}, 31, v{vLANE}")
e(f"v_lshlrev_b32 v{vSSO}, 3, v{vSSO}")
e(f"v_lshrrev_b32 v{vBTO}, 5, v{vLANE}")
e(f"v_lshl_add_u32 v{vBTO}, v{vBTO}, 9, v{vSSO}")
e(f"v_lshrrev_b32 v{vG}, 4, v{vLANE}")
e(f"v_and_b32 v{vN}, 15, v{vLANE}")
e(f"s_and_b32 s{sHKV}, s2, 7")
e(f"s_lshr_b32 s{sITEM}, s2, 3")
e(f"s_sub_u32 s57, s2, {8*N0}")
e("s_lshr_b32 s58, s57, 1")
e(f"s_add_u32 s58, s58, {N0}")
e("s_and_b32 s57, s57, 1")
e("s_lshl_b32 s57, s57, 2")
e(f"s_mov_b32 s{sBT+2}, {8*128*4}")
e(f"s_mov_b32 s{sBT+3}, 0x00020000")
e(f"s_mov_b32 s{sCT+2}, 32")
e(f"s_mov_b32 s{sCT+3}, 0x00020000")
e("s_waitcnt lgkmcnt(0)")
stamp(1)
e(f"s_mov_b32 s{sCT}, s12")
e(f"s_and_b32 s{sCT+1}, s13, 0xffff")
e(f"s_mov_b32 s{sBT}, s10")
e(f"s_and_b32 s{sBT+1}, s11, 0xffff")
e("s_lshr_b32 s56, s6, 8")
e(f"s_sub_u32 s59, {SLOWC}, s56")
e("s_and_b32 s59, s59, 3")
e("s_add_u32 s59, s59, s57")
e(f"s_cmp_ge_u32 s2, {8*N0}")
e(f"s_cselect_b32 s{sHKV}, s59, s{sHKV}")
e(f"s_cselect_b32 s{sITEM}, s58, s{sITEM}")
e(f"s_add_u32 s56, s56, s{sHKV}")
e("s_and_b32 s56, s56, 3")
e(f"s_cmp_eq_u32 s56, {SLOWC}")
e(f"s_cselect_b32 s{sNSH}, {NSHS}, {NSHF}")
e(f"s_cselect_b32 s{sWB}, {32//NSHS}, {32//NSHF}")
e(f"s_cselect_b32 s{sWR}, {32%NSHS}, {32%NSHF}")
e(f"s_cselect_b32 s{sNWGH}, {N1}, {N0}")
def issue_bt():
    e(f"s_cmp_lt_u32 s{sITEM}, s{sNSH}")
    e("s_cselect_b32 s56, 0, 256")
    e(f"buffer_load_dword v{vCTXV}, v{vL4}, s[{sCT}:{sCT+3}], 0 offen")
    e(f"buffer_load_dwordx2 v[{vSS}:{vSS+1}], v{vSSO}, s[{sBT}:{sBT+3}], 0 offen")
    for j in range(4):
        e(f"buffer_load_dwordx2 v[{vR+2*j}:{vR+2*j+1}], v{vBTO}, s[{sBT}:{sBT+3}], s56 offen offset:{j*1024}")
issue_bt()
e(f"s_sub_u32 s{sNPRIV}, s{sNWGH}, s{sNSH}")
srd(sK, 6, KV_BYTES)
srd(sV, 8, KV_BYTES)
srd(sQ, 4, 8*32*128*2)
srd(sOUT, 14, 8*32*128*2)
srd(sDBG, 16, 256)
srd(sWS, 18, WS_O + WS_ML + 65536)
e(f"s_mov_b64 s[{sM8}:{sM8+1}], 0xff")
e(f"s_lshl_b32 s56, s{sHKV}, 8")
e(f"v_lshlrev_b32 v{vKOFF}, 11, v{vN}")
e(f"v_lshl_add_u32 v{vKOFF}, v{vG}, 4, v{vKOFF}")
e(f"v_add_u32 v{vKOFF}, s56, v{vKOFF}")
for odd in range(2):
    vo = vVOFF1 if odd else vVOFF0
    e(f"v_add_u32 v{vT}, {4*odd}, v{vG}")
    e(f"v_lshrrev_b32 v{vT+1}, 1, v{vN}")
    e(f"v_xor_b32 v{vT+1}, v{vT+1}, v{vT}")
    e(f"v_lshlrev_b32 v{vT+1}, 1, v{vT+1}")
    e(f"v_and_b32 v{vT+2}, 1, v{vN}")
    e(f"v_or_b32 v{vT+1}, v{vT+1}, v{vT+2}")
    e(f"v_lshlrev_b32 v{vT+1}, 4, v{vT+1}")
    e(f"v_lshl_add_u32 v{vo}, v{vT}, 11, v{vT+1}")
    e(f"v_add_u32 v{vo}, s56, v{vo}")
e(f"v_mul_u32_u24 v{vMAXR}, {XS}, v{vN}")
e(f"v_add_u32 v{vMAXR}, {LDS_MAX}, v{vMAXR}")
e(f"s_lshl_b32 s57, s{sW}, 4")
e(f"v_lshl_add_u32 v{vMAXW}, v{vG}, 2, s57")
e(f"v_add_u32 v{vMAXW}, v{vMAXW}, v{vMAXR}")
e(f"s_lshl_b32 s57, s{sW}, 11")
e(f"s_add_u32 s57, s57, {LDS_P}")
e(f"v_lshl_add_u32 v{vPW}, v{vLANE}, 4, s57")
e(f"v_lshrrev_b32 v{vT}, 2, v{vN}")
e(f"v_lshl_add_u32 v{vT}, v{vG}, 2, v{vT}")
e(f"v_and_b32 v{vT+1}, 7, v{vT}")
e(f"v_and_b32 v{vT+2}, 3, v{vN}")
e(f"v_lshlrev_b32 v{vT+2}, 3, v{vT+2}")
e(f"v_lshl_add_u32 v{vT+2}, v{vT}, 8, v{vT+2}")
e(f"v_xor_b32 v{vT+3}, s{sW}, v{vT+1}")
e(f"v_lshl_add_u32 v{vTR}, v{vT+3}, 5, v{vT+2}")
e(f"s_lshl_b32 s57, s{sHKV}, 10")
e(f"v_lshl_add_u32 v{vQS}, v{vG}, 8, s57")
e(f"v_mov_b32 v{vMAG}, 0x8000")
e(f"v_mov_b32 v{vT}, 37450")
e(f"v_mov_b32 v{vT+1}, 43691")
e(f"v_cmp_eq_u32 vcc, 1, v{vLANE}")
e(f"v_cmp_eq_u32 s[56:57], 0, v{vLANE}")
e("s_nop 1")
e(f"v_cndmask_b32 v{vMAG}, v{vMAG}, v{vT}, vcc")
e(f"v_cndmask_b32 v{vMAG}, v{vMAG}, v{vT+1}, s[56:57]")
e("s_branch L_item2")
lab("L_item")
issue_bt()
lab("L_item2")
e(f"s_cmp_lt_u32 s{sITEM}, s{sWR}")
e(f"s_addc_u32 s{sCNT}, s{sWB}, 0")
e(f"s_min_u32 s56, s{sITEM}, s{sWR}")
e(f"s_mul_i32 s57, s{sITEM}, s{sWB}")
e(f"s_add_u32 s{sP0}, s56, s57")
e(f"s_mov_b32 s{sSLOT}, s{sITEM}")
e(f"v_lshrrev_b32 v{vT}, 3, v{vSSO}")
e(f"v_subrev_u32 v{vT}, s{sP0}, v{vT}")
e(f"v_cmp_gt_u32 s[{sCHK}:{sCHK+1}], s{sCNT}, v{vT}")
e(f"s_add_u32 s{sPW}, s{sP0}, s{sW}")
e(f"s_lshl_b32 s{sCOL}, s{sPW}, 1")
e(f"s_sub_u32 s{sKK}, s{sITEM}, s{sNSH}")
e("s_waitcnt vmcnt(0)")
stamp(2)
e(f"s_cmp_ge_u32 s{sITEM}, s{sNSH}")
e("s_cbranch_scc1 L_ptype")
e(f"v_readlane_b32 s{sPH0}, v{vSS}, s{sPW}")
e(f"v_readlane_b32 s{sPH1}, v{vSS+1}, s{sPW}")
e(f"v_cmp_ne_u32 vcc, v{vR}, v{vSS}")
for j in range(4):
    for h in range(2):
        if j == 0 and h == 0: continue
        e(f"v_cmp_ne_u32 s[62:63], v{vR+2*j+h}, v{vSS+h}")
        e("s_or_b64 vcc, vcc, s[62:63]")
e(f"s_and_b64 vcc, vcc, s[{sCHK}:{sCHK+1}]")
e(f"s_lshl_b32 s{sPH0}, s{sPH0}, 15")
e(f"s_lshl_b32 s{sPH1}, s{sPH1}, 15")
e("s_cbranch_vccnz L_fallback")
body(True)
e("s_branch L_tail")
lab("L_fallback")
decode_a(); decode_b()
e(f"s_mov_b32 s{sB}, 0")
e(f"s_mov_b32 s{sLIM}, 128")
lab("L_fbloop")
e(f"s_mov_b32 s{sBF}, s{sB}")
e("s_branch L_narrow")
lab("L_ptype")
decode_a()
e(f"s_cmp_ge_u32 s{sITEM}, s{sNIT}")
e("s_cbranch_scc1 L_end")
e(f"s_cmp_ge_u32 s{sKK}, s{sC0}")
e(f"s_cselect_b32 s56, s{sC0}, 0")
e(f"s_cselect_b32 s57, s{sG1}, s{sG0}")
e(f"s_cselect_b32 s{sHM}, 0xf0, s{sHM}")
e(f"s_sub_u32 s{sKK}, s{sKK}, s56")
e(f"s_mul_i32 s56, s{sKK}, s{sSZ}")
e(f"s_add_u32 s59, s56, s{sW}")
e(f"v_cmp_lt_u32 vcc, s59, v{dEN}")
e(f"v_cmp_lt_u32 s[60:61], s56, v{dEN}")
e("s_sub_u32 s57, s57, s56")
e(f"s_min_u32 s{sCNT}, s57, s{sSZ}")
e(f"s_and_b32 s58, s{sHM}, vcc_lo")
e(f"s_ff1_i32_b32 s{sB}, s58")
e(f"s_and_b32 s{sB}, s{sB}, 7")
e(f"s_and_b32 s60, s{sHM}, s60")
e(f"s_ff1_i32_b32 s{sBF}, s60")
e(f"v_readlane_b32 s57, v{dE}, s{sB}")
e(f"v_readlane_b32 s{sLIM}, v{dNB}, s{sB}")
e("s_nop 3")
e(f"s_sub_u32 s{sPW}, s59, s57")
e(f"s_lshl_b32 s{sCOL}, s{sPW}, 1")
e(f"s_add_u32 s{sCOL}, s{sCOL}, 64")
lab("L_narrow")
e(f"s_and_b32 s56, s{sB}, 1")
e("s_lshl_b32 s56, s56, 5")
e(f"s_add_u32 s56, s56, s{sPW}")
e("s_and_b32 s56, s56, 63")
e(f"v_readlane_b32 s{sPH0}, v{vR}, s56")
e(f"v_readlane_b32 s{sPH1}, v{vR+1}, s56")
for j in range(1, 4):
    e(f"v_readlane_b32 s{58+2*j}, v{vR+2*j}, s56")
    e(f"v_readlane_b32 s{59+2*j}, v{vR+2*j+1}, s56")
e(f"v_readlane_b32 s{sCTXB}, v{vCTXV}, s{sB}")
e(f"s_lshr_b32 s57, s{sB}, 1")
e(f"s_add_u32 s58, s{sCOL}, 1")
e("s_nop 2")
for j in range(1, 4):
    e(f"s_cmp_eq_u32 s57, {j}")
    e(f"s_cselect_b32 s{sPH0}, s{58+2*j}, s{sPH0}")
    e(f"s_cselect_b32 s{sPH1}, s{59+2*j}, s{sPH1}")
e(f"s_cmp_lt_u32 s58, s{sLIM}")
e(f"s_cselect_b32 s{sPH1}, s{sPH1}, s{sPH0}")
e(f"s_lshl_b32 s{sPH0}, s{sPH0}, 15")
e(f"s_lshl_b32 s{sPH1}, s{sPH1}, 15")
body(False)
e(f"s_cmp_ge_u32 s{sITEM}, s{sNSH}")
e("s_cbranch_scc1 L_tail")
e(f"s_add_u32 s{sB}, s{sB}, 1")
e(f"s_cmp_ge_u32 s{sB}, 8")
e("s_cbranch_scc1 L_tail")
e("s_waitcnt vmcnt(0) lgkmcnt(0)")
e("s_barrier")
e("s_branch L_fbloop")
lab("L_tail")
e("s_waitcnt vmcnt(0) lgkmcnt(0)")
stamp(5)
e("s_barrier")
e(f"s_cmp_lg_u32 s{sW}, 0")
e("s_cbranch_scc1 L_tail_wait")
e(f"v_lshlrev_b32 v{TT}, 3, v{vLANE}")
e(f"v_add_u32 v{TT}, s{sHKV}, v{TT}")
e(f"v_lshlrev_b32 v{TT}, 2, v{TT}")
e(f"v_mov_b32 v{TT+1}, 1")
e(f"s_mov_b32 exec_lo, s{sPRES}")
e("s_mov_b32 exec_hi, 0")
e(f"buffer_atomic_add v{TT+1}, v{TT}, s[{sDBG}:{sDBG+3}], 0 offen sc0")
e("s_mov_b64 exec, -1")
combine_init()
e(f"s_mov_b32 exec_lo, s{sPRES}")
e("s_mov_b32 exec_hi, 0")
e("s_waitcnt vmcnt(0)")
e(f"v_cmp_eq_u32 vcc, v{vEXP}, v{TT+1}")
e("s_mov_b64 exec, -1")
e("s_nop 1")
e(f"v_mov_b32 v{TT}, {LDS_FLAG}")
e(f"v_mov_b32 v{TT+1}, vcc_lo")
e(f"ds_write_b32 v{TT}, v{TT+1}")
e("s_waitcnt lgkmcnt(0)")
e("s_branch L_tail_wait2")
lab("L_tail_wait")
combine_init()
lab("L_tail_wait2")
stamp(6)
e("s_barrier")
e(f"v_mov_b32 v{TT}, {LDS_FLAG}")
e(f"ds_read_b32 v{TT+1}, v{TT}")
e("s_waitcnt lgkmcnt(0)")
e(f"v_readfirstlane_b32 s61, v{TT+1}")
e("s_nop 3")
combine_code()
e(f"s_add_u32 s{sITEM}, s{sITEM}, s{sNWGH}")
e(f"s_cmp_ge_u32 s{sITEM}, s{sNIT}")
e("s_cbranch_scc1 L_end")
e("s_waitcnt vmcnt(0) lgkmcnt(0)")
e("s_barrier")
e("s_branch L_item")
lab("L_end")
stamp(7)
stamp_flush(8)
lab("L_exit")
e("s_endpgm")
L.append('.section .rodata,"a"')
L.append(".p2align 6")
L.append(f".amdhsa_kernel {NAME}_kernel")
L.append(f"  .amdhsa_next_free_vgpr {NVGPR}")
L.append("  .amdhsa_next_free_sgpr 102")
L.append(f"  .amdhsa_accum_offset {NVGPR}")
L.append("  .amdhsa_group_segment_fixed_size 0")
L.append("  .amdhsa_kernarg_size 64")
L.append("  .amdhsa_user_sgpr_count 2")
L.append("  .amdhsa_user_sgpr_kernarg_segment_ptr 1")
L.append("  .amdhsa_system_sgpr_workgroup_id_x 1")
L.append(".end_amdhsa_kernel")
out = "\n".join(hdr + L) + "\n"
open(OUTP or f"cdna_kernels/{NAME}.s", "w").write(out)
print("ok", len(L), "lds", LDS_TOTAL, "soff", WS_O + WS_ML)
```

```python
import sys, struct
STAMP = False; NT = ' nt'; OUTP = None; N0 = 29; SLOWC = 1; NSHF = 6; NSHS = 8; LIMIT = 1 << 20
WARM = 1; L2W = 1; LSTR = 128; HW0 = 4; FF = 13; FS = 11; SW = 1; PFF = 0; PFS = 0
for a in sys.argv[1:]:
    if a == 'stamp': STAMP = True
    if a == 'nowarm': WARM = 0
    if a == 'nol2w': L2W = 0
    if a.startswith('lstr='): LSTR = int(a[5:])
    if a.startswith('hw0='): HW0 = int(a[4:])
    if a.startswith('o='): OUTP = a[2:]
    if a.startswith('slowc='): SLOWC = int(a[6:])
    if a.startswith('n0='): N0 = int(a[3:])
    if a.startswith('nshf='): NSHF = int(a[5:])
    if a.startswith('nshs='): NSHS = int(a[5:])
    if a.startswith('ff='): FF = int(a[3:])
    if a.startswith('fs='): FS = int(a[3:])
    if a.startswith('sw='): SW = int(a[3:])
    if a.startswith('pff='): PFF = int(a[4:])
    if a.startswith('pfs='): PFS = int(a[4:])
    if a.startswith('limit='): LIMIT = int(a[6:])
NAME = "standalone__paged_block_table_kv_radixattention__sampling"
L = []
def e(s=""): L.append("    " + s)
def lab(s): L.append(s + ":")
def f2u(f): return struct.unpack('<I', struct.pack('<f', f))[0]

NW = 8
NWG = 256
KV_BYTES = 576*32768
NSHMAX = max(NSHF, NSHS)
assert 8 <= FF <= 15 and 8 <= FS <= 15 and 4 <= min(NSHF, NSHS) and NSHMAX <= 8
N1 = (256 - 6*N0)//2
NNAR = 32
HSTR = (2*NSHMAX + NNAR)*8192
MLSTR = (NSHMAX + NNAR)*256
WS_O = 8*HSTR
WS_ML = 8*MLSTR
LDS_B = 65536
LDS_P = 131072
LDS_Q = LDS_P
LDS_MAX = LDS_P + NW*2048
XS = 144
LDS_SUM = LDS_MAX + 32*XS
LDS_FLAG = LDS_SUM + 32*XS
LDS_TOTAL = LDS_FLAG + 64
SCALE = (128 ** -0.5) * 1.4426950408889634
MASKV = -1e9 * 1.4426950408889634

sQ, sK, sV, sBT, sOUT, sDBG, sWS, sCT = 20, 24, 28, 32, 36, 40, 44, 84
sHKV, sITEM, sB, sW, sCNT, sCOL, sEXP, sNIT = 48, 49, 50, 51, 52, 53, 54, 55
sC8 = 101
sPH0, sPH1, sPH2, sPH3 = 82, 83, 64, 65
sP0, sLIM, sCTXB, sNSH = 88, 89, 90, 91
sM8, sCHK = 92, 94
sNPRIV, sNWGH, sGOT, sKK, sMAG, sPRES = 96, 97, 98, 99, 100, 101
sSTM = 4
sPW = 6
sG0, sG1, sSZ, sC0, sHM, sBF, sWB, sWR = 7, 8, 9, 10, 11, 3, 0, 1
sREG, sMLB, sSIG, sF, sNFW, sI0 = 12, 13, 14, 15, 16, 17
sEM = 12
vLANE, vG, vN = 1, 2, 3
vKO = [4, 7, 12, 0]
vVOFF0, vVOFF1 = 5, 6
vMAXW, vMAXR, vPW, vTR, vOUT, vMASK, vQS = 8, 9, 10, 11, 13, 14, 15
vK, vQ, vS = 16, 48, 80
vCTX, vM, vL = 96, 98, 100
vML = 102
vP = 104
vT = 112
vPOS = vT + 31
vPA = 144
vVA = 208
vR, vSS, vCTXV, vTR2, vBTO, vL4, vSSO, vMAG = 240, 248, 250, 251, 252, 253, 254, 255
cOA, cMA, cOUT, vCV, cMO, cLO, cKA = 64, 68, 72, 73, 74, 75, 76
cO, cML, cW = 16, 32, 40
vXM, vFLA = 240, 241
NVGPR = 256

def stamp(i):
    if STAMP: e(f"s_memrealtime s[{66+2*i}:{67+2*i}]")
def stamp_flush(n):
    if not STAMP: return
    e("s_waitcnt lgkmcnt(0)")
    e(f"s_cmp_lg_u32 s{sW}, {SW}")
    e("s_cbranch_scc1 L_nostamp")
    e("s_lshl_b32 s56, s2, 6")
    e(f"s_add_u32 s56, s56, {WS_O + WS_ML}")
    e("v_mov_b32 v60, s56")
    for i in range(n):
        e(f"v_mov_b32 v61, s{66+2*i}")
        e(f"buffer_store_dword v61, v60, s[{sWS}:{sWS+3}], 0 offen offset:{4*i}")
        e("s_nop 1")
    lab("L_nostamp")

def srd(base, lo, nbytes):
    e(f"s_mov_b32 s{base}, s{lo}")
    e(f"s_and_b32 s{base+1}, s{lo+1}, 0xffff")
    e(f"s_mov_b32 s{base+2}, {nbytes}")
    e(f"s_mov_b32 s{base+3}, 0x00020000")

dNB, dNP, dIN, dA, dBt, dE, dEN, dC = vT+16, vT+17, vT+18, vT+19, vT+20, vT+21, vT+22, vT+23
dNQ, dNC = vT+14, vT+15
def decode_a1():
    e(f"v_add_u32 v{dA}, 15, v{vCTXV}")
    e(f"v_add_u32 v{dBt}, -1, v{vCTXV}")
    e(f"v_cmp_gt_u32 vcc, 0x800, v{dBt}")
    e(f"v_lshrrev_b32 v{dA}, 4, v{dA}")
    e(f"v_mov_b32 v{dNB}, 0x80")
    e("s_nop 0")
    e(f"v_cndmask_b32 v{dNB}, v{dNB}, v{dA}, vcc")
    e(f"v_subrev_u32 v{dA}, 63, v{dNB}")
    e(f"v_max_i32 v{dA}, 0, v{dA}")
    e(f"v_lshrrev_b32 v{dNQ}, 1, v{dA}")
    e(f"v_subrev_u32 v{dA}, s{sF}, v{dNQ}")
    e(f"v_max_i32 v{dA}, 0, v{dA}")
def decode_a2():
    e(f"v_cndmask_b32 v{dNP}, 0, v{dA}, s[{sM8}:{sM8+1}]")
    e(f"v_cndmask_b32 v{dIN}, 0, v{dA}, s[{sM8}:{sM8+1}]")
    e(f"v_cmp_gt_u32 s[58:59], 3, v{dA}")
    e("s_nop 0")
    for sh in (1, 2, 4):
        e(f"v_add_u32_dpp v{dIN}, v{dIN}, v{dIN} row_shr:{sh} row_mask:0xf bank_mask:0xf bound_ctrl:0")
        e("s_nop 1")
    e(f"v_readlane_b32 s{sG0}, v{dIN}, 3")
    e(f"v_readlane_b32 s{sG1}, v{dIN}, 7")
    e(f"v_cmp_lt_u32 vcc, 3, v{vLANE}")
    e("s_nop 2")
    e("s_and_b32 s58, s58, 0x7e")
    e(f"s_cselect_b32 s57, s{sG0}, 0")
    e(f"s_cselect_b32 s{sG0}, s{sG0}, s{sG1}")
    e(f"s_cselect_b32 s{sHM}, 15, 0xff")
    e(f"s_sub_u32 s{sG1}, s{sG1}, s{sG0}")
    e(f"v_mov_b32 v{dA}, s57")
    e(f"v_cndmask_b32 v{dA}, 0, v{dA}, vcc")
    e(f"v_add3_u32 v{dBt}, s{sG0}, v{vLANE}, 3")
    e(f"v_add3_u32 v{dC}, s{sG1}, v{vLANE}, 3")
    e(f"v_mul_u32_u24 v{dBt}, v{dBt}, v{vMAG}")
    e(f"v_mul_u32_u24 v{dC}, v{dC}, v{vMAG}")
    e(f"v_lshrrev_b32 v{dBt}, 18, v{dBt}")
    e(f"v_lshrrev_b32 v{dC}, 18, v{dC}")
    e(f"v_add_u32 v{dC}, v{dC}, v{dBt}")
    e(f"v_cmp_ge_u32 vcc, s{sNPRIV}, v{dC}")
    e(f"v_sub_u32 v{dEN}, v{dIN}, v{dA}")
    e(f"v_sub_u32 v{dE}, v{dEN}, v{dNP}")
    e("s_or_b32 s56, vcc_lo, 16")
    e("s_ff1_i32_b32 s56, s56")
    e(f"v_readlane_b32 s{sC0}, v{dBt}, s56")
    e(f"v_readlane_b32 s{sNIT}, v{dC}, s56")
    e(f"v_readlane_b32 s{sMAG}, v{vMAG}, s56")
    e(f"s_add_u32 s{sSZ}, s56, 4")
    e("s_nop 2")
    e(f"s_add_u32 s{sNIT}, s{sNIT}, s{sNFW}")
def decode_b():
    e(f"v_mul_u32_u24 v{dA}, s{sMAG}, v{dE}")
    e(f"v_add_u32 v{dBt}, -1, v{dEN}")
    e(f"v_max_i32 v{dBt}, 0, v{dBt}")
    e(f"v_mul_u32_u24 v{dBt}, s{sMAG}, v{dBt}")
    e(f"v_lshrrev_b32 v{dA}, 18, v{dA}")
    e(f"v_lshrrev_b32 v{dBt}, 18, v{dBt}")

def kdma(ph, slot_off):
    e(f"s_lshl_b32 s60, s{sW}, 13")
    for i in range(8):
        e(f"s_add_u32 m0, s60, {slot_off + i*1024}")
        e("s_nop 0")
        e(f"buffer_load_dwordx4 v{vKO[i&3]}, s[{sK}:{sK+3}], s{ph[i>>2]} offen{NT} lds")
def vdma(ph, slot_off):
    e(f"s_lshl_b32 s60, s{sW}, 13")
    for i in range(8):
        t = i >> 2; hi = (i >> 1) & 1; odd = i & 1
        e(f"s_add_u32 s59, s{ph[t]}, {hi*16384}")
        e(f"s_add_u32 m0, s60, {slot_off + i*1024}")
        e("s_nop 0")
        e(f"buffer_load_dwordx4 v{vVOFF1 if odd else vVOFF0}, s[{sV}:{sV+3}], s59 offen{NT} lds")
def kread(KA, vK=vK):
    for s in range(4):
        for kt in range(2):
            r = vK + kt*16 + s*4
            e(f"ds_read_b128 v[{r}:{r+3}], v{KA+s} offset:{kt*4096}")
def qdma(wide, tag):
    if not wide:
        e(f"s_cmp_ge_u32 s{sW}, 4")
        e(f"s_cbranch_scc1 L_noq_{tag}")
    e(f"s_and_b32 s56, s{sW}, 3")
    e("s_lshl_b32 s56, s56, 2")
    e(f"v_add_u32 v{vT+30}, s56, v{vG}")
    e(f"v_xor_b32 v{vT+30}, v{vT+30}, v{vN}")
    e(f"v_lshl_add_u32 v{vT+30}, v{vT+30}, 4, v{vQS}")
    if wide:
        e(f"s_lshl_b32 s56, s{sW}, 13")
    else:
        e(f"s_sub_u32 s56, s{sW}, s{sBF}")
        e("s_and_b32 s56, s56, 3")
        e(f"s_add_u32 s56, s56, s{sBF}")
        e("s_min_u32 s56, s56, 7")
        e(f"s_lshl_b32 s56, s56, 13")
    e(f"s_lshl_b32 s57, s{sW}, 10")
    e(f"s_add_u32 m0, s57, {LDS_Q}")
    e("s_nop 0")
    e(f"buffer_load_dwordx4 v{vT+30}, s[{sQ}:{sQ+3}], s56 offen lds")
    if not wide: lab(f"L_noq_{tag}")
def qk_addrs(QA, KA):
    e(f"s_lshl_b32 s57, s{sW}, 13")
    for s in range(4):
        e(f"v_add_u32 v{QA+s}, {4*s}, v{vG}")
        e(f"v_xor_b32 v{QA+s}, v{QA+s}, v{vN}")
        e(f"v_lshlrev_b32 v{QA+s}, 4, v{QA+s}")
        e(f"v_lshl_add_u32 v{QA+s}, v{vN}, 8, v{QA+s}")
        e(f"v_add_u32 v{KA+s}, s57, v{QA+s}")
        e(f"v_add_u32 v{QA+s}, {LDS_Q}, v{QA+s}")
def narrow_mask():
    e(f"s_and_b32 s56, s{sB}, 3")
    e(f"v_lshrrev_b32 v{vT+28}, 2, v{vN}")
    e(f"v_cmp_eq_u32 vcc, s56, v{vT+28}")
    e(f"v_mov_b32 v{vT+28}, s{sCTXB}")
    e(f"v_mov_b32 v{vT+29}, {f2u(MASKV):#x}")
    e(f"v_mov_b32 v{vCTX}, 0xc0000000")
    e(f"v_mov_b32 v{vMASK}, 0xff800000")
    e(f"v_cndmask_b32 v{vCTX}, v{vCTX}, v{vT+28}, vcc")
    e(f"v_cndmask_b32 v{vMASK}, v{vMASK}, v{vT+29}, vcc")
def scale_mask(qt, lim):
    for kt in range(2):
        for i in range(4):
            r = vS + (kt*2+qt)*4 + i
            e(f"v_cmp_lt_i32 vcc, {kt*16+i}, v{lim}")
            e(f"v_mul_f32 v{r}, s56, v{r}")
            e("s_nop 0")
            e(f"v_cndmask_b32 v{r}, v{vMASK}, v{r}, vcc")
def max8(dst, qt, first=True):
    a = vS + qt*4; b = vS + (2+qt)*4
    if first:
        e(f"v_max3_f32 v{dst}, v{a}, v{a+1}, v{a+2}")
        e(f"v_max3_f32 v{dst}, v{dst}, v{a+3}, v{b}")
        e(f"v_max3_f32 v{dst}, v{dst}, v{b+1}, v{b+2}")
        e(f"v_max_f32 v{dst}, v{dst}, v{b+3}")
    else:
        e(f"v_max3_f32 v{dst}, v{dst}, v{a}, v{a+1}")
        e(f"v_max3_f32 v{dst}, v{dst}, v{a+2}, v{a+3}")
        e(f"v_max3_f32 v{dst}, v{dst}, v{b}, v{b+1}")
        e(f"v_max3_f32 v{dst}, v{dst}, v{b+2}, v{b+3}")
def maxread(nq):
    for qt in range(nq):
        for j in range(8):
            e(f"ds_read_b128 v[{vT+4*j}:{vT+4*j+3}], v{vMAXR} offset:{qt*16*XS+16*j}")
        e("s_waitcnt lgkmcnt(0)")
        e(f"v_max3_f32 v{vM+qt}, v{vT}, v{vT+1}, v{vT+2}")
        for j in range(3, 31, 2):
            e(f"v_max3_f32 v{vM+qt}, v{vM+qt}, v{vT+j}, v{vT+j+1}")
        e(f"v_max_f32 v{vM+qt}, v{vM+qt}, v{vT+31}")
def exp_p(qts, mreg):
    for qt in qts:
        for kt in range(2):
            for i in range(4):
                r = vS + (kt*2+qt)*4 + i
                e(f"v_sub_f32 v{r}, v{r}, v{mreg(qt)}")
    for qt in qts:
        for kt in range(2):
            for i in range(4):
                r = vS + (kt*2+qt)*4 + i
                e(f"v_exp_f32 v{r}, v{r}")
    e("s_nop 0")
    for qt in qts:
        a = vS + qt*4; b = vS + (2+qt)*4
        e(f"v_add_f32 v{vL+qt}, v{a}, v{a+1}")
        e(f"v_add_f32 v{vT}, v{a+2}, v{a+3}")
        e(f"v_add_f32 v{vT+1}, v{b}, v{b+1}")
        e(f"v_add_f32 v{vT+2}, v{b+2}, v{b+3}")
        e(f"v_add_f32 v{vL+qt}, v{vL+qt}, v{vT}")
        e(f"v_add_f32 v{vT+1}, v{vT+1}, v{vT+2}")
        e(f"v_add_f32 v{vL+qt}, v{vL+qt}, v{vT+1}")
        p = vP + qt*4
        e(f"v_cvt_pk_bf16_f32 v{p}, v{a}, v{a+1}")
        e(f"v_cvt_pk_bf16_f32 v{p+1}, v{a+2}, v{a+3}")
        e(f"v_cvt_pk_bf16_f32 v{p+2}, v{b}, v{b+1}")
        e(f"v_cvt_pk_bf16_f32 v{p+3}, v{b+2}, v{b+3}")
        e(f"ds_write_b128 v{vPW}, v[{p}:{p+3}] offset:{qt*1024}")
def pread(nq):
    e(f"v_lshlrev_b32 v{vP}, 4, v{vLANE}")
    e(f"v_add_u32 v{vP}, {LDS_P}, v{vP}")
    for w2 in range(NW):
        for qt in range(nq):
            r = vPA + (w2*2+qt)*4
            e(f"ds_read_b128 v[{r}:{r+3}], v{vP} offset:{w2*2048 + qt*1024}")
def lsum(qt):
    for j in range(8):
        e(f"ds_read_b128 v[{vT+4*j}:{vT+4*j+3}], v{vMAXR} offset:{qt*16*XS+16*j + LDS_SUM - LDS_MAX}")
    e("s_waitcnt lgkmcnt(0)")
    st = 1
    while st < 32:
        for j in range(0, 32, 2*st):
            e(f"v_add_f32 v{vT+j}, v{vT+j}, v{vT+j+st}")
        st *= 2
def trread(tr):
    for w2 in range(NW):
        r = vVA + w2*4
        e(f"ds_read_b64_tr_b16 v[{r}:{r+1}], v{tr} offset:{w2*8192}")
        e(f"ds_read_b64_tr_b16 v[{r+2}:{r+3}], v{tr} offset:{w2*8192+4096}")

def pv_pre(cnt, tag, waits):
    if waits is None:
        for k in range(1, 8):
            e(f"s_cmp_le_i32 s{cnt}, {k}")
            e(f"s_cbranch_scc1 L_pr{k}_{tag}")
        return
    for k in range(8, 1, -1):
        e(f"s_cmp_ge_i32 s{cnt}, {k}")
        e(f"s_cbranch_scc1 L_pb{k}_{tag}")
    for k in range(1, 9):
        lab(f"L_pb{k}_{tag}")
        for x in waits: x() if callable(x) else e(x)
        e("s_barrier")
        if k < 8: e(f"s_branch L_pr{k}_{tag}")
def pv(tr, cnt, qts, tag, acc):
    for k in range(8, 0, -1):
        w2 = k - 1
        lab(f"L_pr{k}_{tag}")
        r = vVA + w2*4
        e(f"ds_read_b64_tr_b16 v[{r}:{r+1}], v{tr} offset:{w2*8192}")
        e(f"ds_read_b64_tr_b16 v[{r+2}:{r+3}], v{tr} offset:{w2*8192+4096}")
    for k in range(1, 8):
        e(f"s_cmp_le_i32 s{cnt}, {k}")
        e(f"s_cbranch_scc1 L_pm{k}_{tag}")
    for k in range(8, 0, -1):
        w2 = k - 1
        lab(f"L_pm{k}_{tag}")
        e(f"s_waitcnt lgkmcnt({2*w2})")
        for qt in qts:
            d = acc(qt); a = vVA + w2*4; b = vPA + (w2*2+qt)*4
            e(f"v_mfma_f32_16x16x32_bf16 v[{d}:{d+3}], v[{a}:{a+3}], v[{b}:{b+3}], v[{d}:{d+3}]")
def qk(qts, kreg, qreg):
    for s in range(4):
        for kt in range(2):
            for qt in qts:
                d = vS + (kt*2+qt)*4; a = kreg + kt*16 + s*4; b = qreg(qt) + s*4
                c = "0" if s == 0 else f"v[{d}:{d+3}]"
                e(f"v_mfma_f32_16x16x32_bf16 v[{d}:{d+3}], v[{a}:{a+3}], v[{b}:{b+3}], {c}")

def signal(tag):
    e(f"s_cmp_lg_u32 s{sSIG}, 7")
    e(f"s_cbranch_scc1 L_nosig_{tag}")
    e(f"v_mov_b32 v{vML}, 1")
    e("s_mov_b64 exec, 1")
    e(f"buffer_store_byte v{vML}, off, s[{sDBG}:{sDBG+3}], s2 sc1")
    e("s_mov_b64 exec, -1")
    lab(f"L_nosig_{tag}")

def body(wide):
    nq = 2 if wide else 1
    tag = "W" if wide else "N"
    QA = vT + 24; KA = vT + 8
    qdma(wide, tag)
    e(f"s_cmp_ge_u32 s{sW}, s{sCNT}")
    e(f"s_cbranch_scc1 L_nok_{tag}")
    kdma([sPH0, sPH1], 0)
    lab(f"L_nok_{tag}")
    if wide:
        decode_a1(); decode_a2()
    else:
        e(f"s_cmp_lt_u32 s{sITEM}, s{sNFW}")
        e("s_cbranch_scc1 L_fbslot")
        decode_b()
        e(f"v_cmp_ge_u32 vcc, s{sKK}, v{dA}")
        e(f"v_cmp_le_u32 s[56:57], s{sKK}, v{dBt}")
        e(f"v_cmp_lt_u32 s[58:59], 0, v{dNP}")
        e(f"s_mov_b32 s{sPRES}, 0")
        e("s_nop 0")
        e("s_and_b32 s56, s56, vcc_lo")
        e("s_and_b32 s56, s56, s58")
        e(f"s_and_b32 s62, s56, s{sHM}")
        e("s_branch L_slotdone")
        lab("L_fbslot")
        e(f"s_lshl_b32 s62, 1, s{sB}")
        e(f"s_lshr_b32 s{sPRES}, s{sB}, 2")
        lab("L_slotdone")
        e("s_lshr_b32 s63, s62, 4")
        e("s_or_b32 s62, s62, s63")
        e(f"v_lshrrev_b32 v{vT+28}, 2, v{vN}")
        e(f"v_lshrrev_b32 v{vT+28}, v{vT+28}, s62")
        e(f"v_and_b32 v{vT+28}, 1, v{vT+28}")
        e(f"v_cmp_ne_u32 s[{sSTM}:{sSTM+1}], 0, v{vT+28}")
    NI = 0
    e(f"s_add_u32 s56, s{sI0}, s{sNWGH}")
    e("s_sub_u32 s56, s56, 8")
    e(f"s_cmp_ge_u32 s56, s{sNIT}")
    e(f"s_cbranch_scc1 L_no2_{tag}")
    e(f"s_cmp_lg_u32 s{sSIG}, s{sW}")
    e(f"s_cbranch_scc1 L_no2_{tag}")
    e(f"s_sub_u32 s56, s56, s{sNFW}")
    e(f"s_add_u32 s57, s56, {2*NSHMAX}")
    e("s_lshl_b32 s57, s57, 13")
    e(f"s_mul_i32 s58, s{sHKV}, {HSTR}")
    e("s_add_u32 s57, s57, s58")
    e(f"s_add_u32 s56, s56, {NSHMAX}")
    e("s_lshl_b32 s56, s56, 8")
    e(f"s_mul_i32 s58, s{sHKV}, {MLSTR}")
    e("s_add_u32 s56, s56, s58")
    e(f"s_add_u32 s56, s56, {WS_O}")
    for k in range(4): e(f"v_mov_b32 v{vPA+k}, -1")
    e(f"buffer_store_dwordx4 v[{vPA}:{vPA+3}], v{vOUT}, s[{sWS}:{sWS+3}], s57 offen sc1")
    e("s_mov_b64 exec, 0xffff")
    e(f"buffer_store_dwordx2 v[{vPA}:{vPA+1}], v{vSSO}, s[{sWS}:{sWS+3}], s56 offen sc1")
    e("s_mov_b64 exec, -1")
    e("s_waitcnt vmcnt(0)")
    lab(f"L_no2_{tag}")
    e(f"s_cmp_ge_u32 s{sW}, s{sCNT}")
    e(f"s_cbranch_scc1 L_idle1_{tag}")
    e(f"s_lshl_b32 s57, s{sCOL}, 4")
    e(f"v_lshl_add_u32 v{vPOS}, v{vG}, 2, s57")
    if wide:
        e(f"v_and_b32 v{vT+28}, 12, v{vN}")
        e(f"v_add_u32 v{vT+29}, 16, v{vT+28}")
        e(f"ds_bpermute_b32 v{vCTX}, v{vT+28}, v{vCTXV}")
        e(f"ds_bpermute_b32 v{vCTX+1}, v{vT+29}, v{vCTXV}")
        e(f"v_mov_b32 v{vMASK}, {f2u(MASKV):#x}")
    else:
        narrow_mask()
    qk_addrs(QA, KA)
    e(f"s_waitcnt vmcnt({8+NI})")
    e("s_barrier")
    signal(tag + "a")
    vdma([sPH0, sPH1], LDS_B)
    for qt in range(nq):
        for s in range(4):
            r = vQ + qt*16 + s*4
            e(f"ds_read_b128 v[{r}:{r+3}], v{QA+s} offset:{qt*4096}")
    e(f"s_waitcnt vmcnt({8+NI}) lgkmcnt(0)")
    stamp(3)
    kread(KA)
    for qt in range(nq):
        e(f"v_sub_u32 v{vT+qt}, v{vCTX+qt}, v{vPOS}")
    e(f"s_mov_b32 s56, {f2u(SCALE):#x}")
    e("s_waitcnt lgkmcnt(0)")
    qk(range(nq), vK, lambda qt: vQ + qt*16)
    e("s_nop 7")
    for qt in range(nq): scale_mask(qt, vT+qt)
    for qt in range(nq): max8(vM+qt, qt)
    e(f"s_branch L_maxw_{tag}")
    lab(f"L_idle1_{tag}")
    e("s_waitcnt vmcnt(0)")
    e("s_barrier")
    signal(tag + "b")
    for qt in range(nq):
        e(f"v_mov_b32 v{vM+qt}, 0xff800000")
    lab(f"L_maxw_{tag}")
    for qt in range(nq):
        e(f"ds_write_b32 v{vMAXW}, v{vM+qt} offset:{qt*16*XS}")
    e("s_waitcnt lgkmcnt(0)")
    e("s_barrier")
    e(f"s_mov_b32 s{sSIG}, 99")
    maxread(nq)
    e(f"s_cmp_ge_u32 s{sW}, s{sCNT}")
    e(f"s_cbranch_scc1 L_idle2_{tag}")
    exp_p(range(nq), lambda qt: vM + qt)
    e(f"s_branch L_sumw_{tag}")
    lab(f"L_idle2_{tag}")
    for qt in range(nq):
        e(f"v_mov_b32 v{vL+qt}, 0")
    lab(f"L_sumw_{tag}")
    for qt in range(nq):
        e(f"ds_write_b32 v{vMAXW}, v{vL+qt} offset:{qt*16*XS + LDS_SUM - LDS_MAX}")
    e("s_waitcnt lgkmcnt(0)")
    e("s_barrier")
    pread(nq)
    for k in range(4*nq): e(f"v_mov_b32 v{vS+k}, 0")
    if wide:
        e(f"s_add_u32 s63, s{sREG}, 8192")
    else:
        e(f"s_lshl_b32 s63, s{sPRES}, 13")
        e(f"s_add_u32 s63, s63, s{sREG}")
        e(f"s_lshl_b32 s60, s{sPRES}, 7")
        e(f"s_add_u32 s60, s60, s{sMLB}")
    e(f"s_cmp_lg_u32 s{sW}, 7")
    e(f"s_cbranch_scc1 L_nosum_{tag}")
    for qt in range(nq):
        lsum(qt)
        e(f"v_min_u32 v{vML+4*qt}, -2, v{vM+qt}")
        e(f"v_min_u32 v{vML+4*qt+1}, -2, v{vT}")
    if wide: e("s_mov_b64 exec, 0xffff")
    else:
        e(f"s_and_b32 exec_lo, s{sSTM}, 0xffff")
        e("s_mov_b32 exec_hi, 0")
    for qt in range(nq):
        so = f"s{sMLB}" if wide else "s60"
        e(f"buffer_store_dwordx2 v[{vML+4*qt}:{vML+4*qt+1}], v{vSSO}, s[{sWS}:{sWS+3}], {so} offen offset:{qt*128} sc1")
    e("s_mov_b64 exec, -1")
    e(f"s_waitcnt vmcnt({nq})")
    e(f"s_branch L_vbar_{tag}")
    lab(f"L_nosum_{tag}")
    e("s_waitcnt vmcnt(0)")
    lab(f"L_vbar_{tag}")
    stamp(4)
    pv_pre(sCNT, tag, ["s_waitcnt lgkmcnt(0)"])
    pv(vTR2, sCNT, range(nq), tag, lambda qt: vS + qt*4)
    e("s_nop 7")
    for qt in range(nq):
        for k in range(4):
            e(f"v_min_u32 v{vS+qt*4+k}, -2, v{vS+qt*4+k}")
    if not wide:
        e(f"s_mov_b64 exec, s[{sSTM}:{sSTM+1}]")
    for qt in range(nq):
        d = vS + qt*4
        so = f"s{sREG}" if (qt == 0 and wide) else "s63"
        e(f"buffer_store_dwordx4 v[{d}:{d+3}], v{vOUT}, s[{sWS}:{sWS+3}], {so} offen sc1")
    if not wide:
        e("s_mov_b64 exec, -1")

def part_loads(masks=None):
    for j in range(4):
        if masks: e(f"s_mov_b64 exec, s[{masks+2*j}:{masks+2*j+1}]")
        e(f"buffer_load_dwordx2 v[{cML+2*j}:{cML+2*j+1}], v{cMA+j}, s[{sWS}:{sWS+3}], 0 offen sc1")
        e(f"buffer_load_dwordx4 v[{cO+4*j}:{cO+4*j+3}], v{cOA+j}, s[{sWS}:{sWS+3}], 0 offen sc1")
    if masks: e("s_mov_b64 exec, -1")
def poll(tag=None):
    if tag:
        e(f"s_cmp_lg_u32 s{sW}, 7")
        e(f"s_cbranch_scc1 L_nopoll_{tag}")
    e(f"buffer_load_dword v{vCV}, v{vL4}, s[{sDBG}:{sDBG+3}], 0 offen sc1")
    if tag: lab(f"L_nopoll_{tag}")
def pollchk():
    e(f"v_and_b32 v{vCV}, v{vCV}, v{vXM}")
    e(f"v_cmp_ne_u32 vcc, v{vCV}, v{vXM}")

def finisher():
    QA = vT + 24; KB = vT + 8; KA = cKA
    vKB = vPA
    e("s_waitcnt vmcnt(0)")
    stamp(2)
    decode_a1()
    e(f"s_mov_b32 s{sB}, s{sITEM}")
    e(f"s_mov_b32 s{sBF}, s{sITEM}")
    e(f"v_readlane_b32 s56, v{dA}, s{sITEM}")
    e(f"v_readlane_b32 s57, v{dNQ}, s{sITEM}")
    e(f"v_readlane_b32 s{sLIM}, v{dNB}, s{sITEM}")
    e(f"v_readlane_b32 s{sCTXB}, v{vCTXV}, s{sITEM}")
    e("s_nop 1")
    e(f"s_add_u32 s{sPW}, s56, s{sW}")
    e(f"s_add_u32 s58, s{sPW}, 8")
    e(f"s_sub_u32 s{sCNT}, s57, s56")
    e(f"v_readlane_b32 s{sPH0}, v{vSS}, s{sPW}")
    e(f"v_readlane_b32 s{sPH1}, v{vSS+1}, s{sPW}")
    e(f"v_readlane_b32 s{sPH2}, v{vSS}, s58")
    e(f"v_readlane_b32 s{sPH3}, v{vSS+1}, s58")
    e(f"s_lshl_b32 s{sCOL}, s{sPW}, 1")
    e(f"s_add_u32 s{sCOL}, s{sCOL}, 64")
    e(f"s_sub_u32 s{sC8}, s{sCNT}, 8")
    e(f"s_add_u32 s58, s{sCOL}, 1")
    e(f"s_cmp_lt_u32 s58, s{sLIM}")
    e(f"s_cselect_b32 s{sPH1}, s{sPH1}, s{sPH0}")
    e(f"s_add_u32 s58, s{sCOL}, 17")
    e(f"s_cmp_lt_u32 s58, s{sLIM}")
    e(f"s_cselect_b32 s{sPH3}, s{sPH3}, s{sPH2}")
    for r in (sPH0, sPH1, sPH2, sPH3): e(f"s_lshl_b32 s{r}, s{r}, 15")
    qdma(False, "F")
    e(f"s_cmp_ge_u32 s{sW}, s{sCNT}")
    e("s_cbranch_scc1 L_nok_F")
    kdma([sPH0, sPH1], 0)
    e(f"s_cmp_ge_i32 s{sW}, s{sC8}")
    e("s_cbranch_scc1 L_nok_F")
    kdma([sPH2, sPH3], LDS_B)
    lab("L_nok_F")
    decode_a2(); decode_b()
    e(f"v_cmp_lt_u32 vcc, 0, v{dNP}")
    e(f"v_sub_u32 v{dC}, v{dBt}, v{dA}")
    e(f"v_add_u32 v{dC}, 1, v{dC}")
    e(f"v_cndmask_b32 v{dNC}, 0, v{dC}, vcc")
    e(f"s_cmp_eq_u32 s{sHM}, 0xff")
    e(f"s_cselect_b32 s60, 0, s{sC0}")
    e(f"s_cmp_gt_u32 s{sB}, 3")
    e("s_cselect_b32 s60, s60, 0")
    e(f"v_readlane_b32 s61, v{dA}, s{sB}")
    e(f"v_readlane_b32 s62, v{dNC}, s{sB}")
    e(f"s_and_b32 s56, s{sHKV}, 3")
    e("s_lshl_b32 s56, s56, 3")
    e("s_lshl_b32 s56, 1, s56")
    e(f"s_lshr_b32 s57, s{sHKV}, 2")
    e("s_lshl_b32 s58, s57, 3")
    e("s_lshl_b32 s58, 0x10001, s58")
    e(f"s_cmp_eq_u32 s{sNWGH}, {N0}")
    e("s_cselect_b32 s58, 0, s58")
    e(f"v_and_b32 v{vT}, 1, v{vLANE}")
    e(f"v_cmp_eq_u32 vcc, s57, v{vT}")
    e(f"v_mov_b32 v{vT}, s56")
    e(f"v_mov_b32 v{vT+1}, s58")
    e(f"v_cndmask_b32 v{vXM}, 0, v{vT}, vcc")
    e(f"v_cmp_lt_u32 vcc, 15, v{vLANE}")
    e("s_nop 0")
    e(f"v_mov_b32 v{vFLA}, {LDS_FLAG}")
    e(f"v_cndmask_b32 v{vXM}, 0, v{vXM}, vcc")
    e(f"v_cmp_le_u32 vcc, {2*N0}, v{vLANE}")
    e("s_nop 1")
    e(f"v_cndmask_b32 v{vXM}, v{vXM}, v{vT+1}, vcc")
    e("s_add_u32 s61, s61, s60")
    e(f"s_add_u32 s62, s62, s{sNSH}")
    e(f"s_sub_u32 s61, s61, s{sNSH}")
    vq, vc, vw, vn = vT, vT+1, vT+2, vT+3
    e(f"v_lshrrev_b32 v{vq}, 2, v{vN}")
    e(f"v_and_b32 v{vc}, 3, v{vN}")
    e(f"s_and_b32 s56, s{sB}, 3")
    e(f"v_cmp_eq_u32 s[{sSTM}:{sSTM+1}], s56, v{vq}")
    e("s_lshl_b32 s56, s56, 2")
    e(f"v_add_u32 v{vc}, s56, v{vc}")
    e(f"s_lshl_b32 s56, s{sB}, 13")
    e(f"s_lshl_b32 s57, s{sHKV}, 10")
    e("s_add_u32 s56, s56, s57")
    e(f"s_lshl_b32 s57, s{sW}, 5")
    e("s_add_u32 s56, s56, s57")
    e(f"v_lshl_add_u32 v{cOUT}, v{vG}, 3, s56")
    e(f"v_lshl_add_u32 v{cOUT}, v{vN}, 8, v{cOUT}")
    e(f"s_mul_i32 s56, s{sHKV}, {HSTR}")
    e(f"s_lshl_b32 s57, s{sW}, 10")
    e("s_add_u32 s56, s56, s57")
    e(f"v_lshl_add_u32 v{vT+4}, v{vG}, 8, s56")
    e(f"v_lshl_add_u32 v{vT+4}, v{vc}, 4, v{vT+4}")
    e(f"s_lshr_b32 s57, s{sB}, 2")
    e("s_lshl_b32 s58, s57, 13")
    e(f"v_lshl_add_u32 v{vw}, v{vq}, 14, s58")
    e(f"v_add_u32 v{vw}, v{vw}, v{vT+4}")
    e(f"s_add_u32 s58, s61, {2*NSHMAX}")
    e("s_lshl_b32 s58, s58, 13")
    e(f"v_lshl_add_u32 v{vn}, v{vq}, 13, s58")
    e(f"v_add_u32 v{vn}, v{vn}, v{vT+4}")
    e(f"s_mul_i32 s56, s{sHKV}, {MLSTR}")
    e(f"s_add_u32 s56, s56, {WS_O}")
    e(f"v_lshl_add_u32 v{vT+5}, v{vc}, 3, s56")
    e(f"v_lshl_add_u32 v{vT+5}, v{vq}, 8, v{vT+5}")
    e("s_lshl_b32 s57, s57, 7")
    e(f"s_add_u32 s58, s61, {NSHMAX}")
    e("s_lshl_b32 s58, s58, 8")
    e(f"v_add_u32 v{vT+6}, s57, v{vT+5}")
    e(f"v_add_u32 v{vT+7}, s58, v{vT+5}")
    e(f"v_mov_b32 v{vT+4}, 0x7fff0000")
    for j in range(4):
        e(f"s_sub_u32 s56, s{sNSH}, {4*j}")
        e(f"s_sub_u32 s57, s62, {4*j}")
        e(f"v_cmp_gt_i32 vcc, s56, v{vq}")
        e(f"v_cmp_gt_i32 s[{sEM+2*j}:{sEM+2*j+1}], s57, v{vq}")
        e(f"v_add_u32 v{vT+12}, {j*65536}, v{vw}")
        e(f"v_add_u32 v{vT+13}, {j*32768}, v{vn}")
        e(f"v_cndmask_b32 v{cOA+j}, v{vT+13}, v{vT+12}, vcc")
        e(f"v_cndmask_b32 v{cMA+j}, v{vT+7}, v{vT+6}, vcc")
        if j: e(f"v_add_u32 v{cMA+j}, {j*1024}, v{cMA+j}")
        e(f"v_cndmask_b32 v{cOA+j}, v{vT+4}, v{cOA+j}, s[{sEM+2*j}:{sEM+2*j+1}]")
        e(f"v_cndmask_b32 v{cMA+j}, v{vT+4}, v{cMA+j}, s[{sEM+2*j}:{sEM+2*j+1}]")
    e(f"s_cmp_ge_u32 s{sW}, s{sCNT}")
    e("s_cbranch_scc1 L_idle1_F")
    e(f"s_lshl_b32 s57, s{sCOL}, 4")
    e(f"v_lshl_add_u32 v{vPOS}, v{vG}, 2, s57")
    narrow_mask()
    qk_addrs(QA, KA)
    for s in range(4): e(f"v_add_u32 v{KB+s}, {LDS_B}, v{KA+s}")
    e(f"v_sub_u32 v{vT}, v{vCTX}, v{vPOS}")
    e(f"v_subrev_u32 v{vT+1}, 256, v{vT}")
    e(f"s_cmp_lt_i32 s{sW}, s{sC8}")
    e("s_cbranch_scc1 L_f1")
    e("s_waitcnt vmcnt(8)")
    lab("L_f1")
    e("s_waitcnt vmcnt(16)")
    e("s_barrier")
    for s in range(4):
        r = vQ + s*4
        e(f"ds_read_b128 v[{r}:{r+3}], v{QA+s}")
    e("s_cbranch_scc1 L_f2")
    e("s_waitcnt vmcnt(0)")
    lab("L_f2")
    e("s_waitcnt vmcnt(8)")
    stamp(3)
    kread(KA)
    e("s_waitcnt lgkmcnt(0)")
    vdma([sPH0, sPH1], 0)
    poll("a")
    qk([0], vK, lambda qt: vQ)
    e(f"s_mov_b32 s56, {f2u(SCALE):#x}")
    e("s_nop 7")
    scale_mask(0, vT)
    max8(vM, 0)
    e(f"s_cmp_ge_i32 s{sW}, s{sC8}")
    e("s_cbranch_scc1 L_maxw_F")
    e("s_waitcnt vmcnt(8)")
    kread(KB, vKB)
    e("s_waitcnt lgkmcnt(0)")
    vdma([sPH2, sPH3], LDS_B)
    qk([1], vKB, lambda qt: vQ)
    e("s_nop 7")
    scale_mask(1, vT+1)
    max8(vM, 1, False)
    e("s_branch L_maxw_F")
    lab("L_idle1_F")
    e("s_waitcnt vmcnt(0)")
    e("s_barrier")
    poll("b")
    e(f"v_mov_b32 v{vM}, 0xff800000")
    lab("L_maxw_F")
    e(f"ds_write_b32 v{vMAXW}, v{vM}")
    e("s_waitcnt lgkmcnt(0)")
    e("s_barrier")
    maxread(1)
    e(f"v_mov_b32 v{vL}, 0")
    e(f"s_cmp_ge_u32 s{sW}, s{sCNT}")
    e("s_cbranch_scc1 L_sumw_F")
    e(f"s_cmp_lt_i32 s{sW}, s{sC8}")
    e("s_cbranch_scc1 L_exp2_F")
    exp_p([0], lambda qt: vM)
    e("s_branch L_sumw_F")
    lab("L_exp2_F")
    exp_p([0, 1], lambda qt: vM)
    e(f"v_add_f32 v{vL}, v{vL}, v{vL+1}")
    lab("L_sumw_F")
    e(f"ds_write_b32 v{vMAXW}, v{vL} offset:{LDS_SUM - LDS_MAX}")
    e("s_waitcnt lgkmcnt(0)")
    e("s_barrier")
    pread(2)
    for k in range(4): e(f"v_mov_b32 v{vS+k}, 0")
    e(f"v_mov_b32 v{cW+7}, 0xff800000")
    lsum(0)
    e(f"v_cndmask_b32 v{cMO}, v{cW+7}, v{vM}, s[{sSTM}:{sSTM+1}]")
    e(f"v_cndmask_b32 v{cLO}, 0, v{vT}, s[{sSTM}:{sSTM+1}]")
    e(f"s_cmp_lt_i32 s{sW}, s{sC8}")
    e("s_cbranch_scc1 L_f3")
    e("s_waitcnt vmcnt(0)")
    lab("L_f3")
    e("s_waitcnt vmcnt(8)")
    stamp(4)
    e(f"s_cmp_lg_u32 s{sW}, 7")
    e("s_cbranch_scc1 L_f3b")
    pollchk()
    e(f"v_mov_b32 v{vCV}, 8")
    e("s_cbranch_vccz L_f3a")
    e(f"v_mov_b32 v{vCV}, 0")
    lab("L_f3a")
    e(f"ds_write_b32 v{vFLA}, v{vCV}")
    e("s_waitcnt lgkmcnt(0)")
    lab("L_f3b")
    e("s_barrier")
    e(f"ds_read_b32 v{vCV}, v{vFLA}")
    e("s_waitcnt lgkmcnt(0)")
    e(f"v_readfirstlane_b32 s{sGOT}, v{vCV}")
    e("s_nop 3")
    e(f"s_cmp_eq_u32 s{sGOT}, 0")
    e("s_cbranch_scc1 L_f4")
    part_loads()
    lab("L_f4")
    e(f"s_cmp_eq_u32 s{sCNT}, 0")
    e("s_cbranch_scc1 L_f6")
    pv_pre(sCNT, "Fa", None)
    pv(vTR, sCNT, [0], "Fa", lambda qt: vS)
    e(f"s_cmp_le_i32 s{sC8}, 0")
    e("s_cbranch_scc1 L_f6")
    e(f"s_cmp_lg_u32 s{sGOT}, 0")
    e("s_cbranch_scc1 L_f5")
    e("s_waitcnt vmcnt(0)")
    lab("L_f5")
    pv_pre(sC8, "Fb", ["s_waitcnt vmcnt(8)", lambda: stamp(5)])
    pv(vTR2, sC8, [1], "Fb", lambda qt: vS)
    lab("L_f6")
    e(f"s_mov_b32 s{sKK}, 0")
    e(f"s_cmp_lg_u32 s{sGOT}, 0")
    e("s_cbranch_scc1 L_chk")
    lab("L_pl")
    poll()
    e("s_waitcnt vmcnt(0)")
    pollchk()
    e(f"s_add_u32 s{sKK}, s{sKK}, 1")
    e("s_cbranch_vccz L_pl2")
    e(f"s_cmp_lt_u32 s{sKK}, {LIMIT}")
    e("s_cbranch_scc1 L_pl")
    lab("L_pl2")
    part_loads()
    lab("L_chk")
    e("s_waitcnt vmcnt(0)")
    T = cW
    for j in range(4):
        e(f"v_max3_u32 v{T+j}, v{cO+4*j}, v{cO+4*j+1}, v{cO+4*j+2}")
        e(f"v_max3_u32 v{T+j}, v{T+j}, v{cO+4*j+3}, v{cML+2*j}")
        e(f"v_max_u32 v{T+j}, v{T+j}, v{cML+2*j+1}")
    e(f"v_max3_u32 v{T+4}, v{T}, v{T+1}, v{T+2}")
    e(f"v_max_u32 v{T+4}, v{T+4}, v{T+3}")
    e(f"v_cmp_eq_u32 vcc, -1, v{T+4}")
    e(f"s_add_u32 s{sKK}, s{sKK}, 1")
    e("s_cbranch_vccz L_comb")
    e(f"s_cmp_ge_u32 s{sKK}, {LIMIT}")
    e("s_cbranch_scc1 L_comb")
    for j in range(4):
        e(f"v_cmp_eq_u32 s[{56+2*j}:{57+2*j}], -1, v{T+j}")
    e("s_nop 3")
    part_loads(56)
    e("s_branch L_chk")
    lab("L_comb")
    stamp(6)
    M, Ls, R = vT, vT+1, vT+2
    W = cW
    for j in range(1, 4):
        e(f"v_cndmask_b32 v{cML+2*j}, v{cW+7}, v{cML+2*j}, s[{sEM+2*j}:{sEM+2*j+1}]")
    e(f"v_max3_f32 v{M}, v{cML}, v{cML+2}, v{cML+4}")
    e(f"v_max3_f32 v{M}, v{M}, v{cML+6}, v{cMO}")
    for k in range(4):
        e(f"v_cndmask_b32 v{vS+k}, 0, v{vS+k}, s[{sSTM}:{sSTM+1}]")
        if k & 1:
            e(f"v_max_f32_dpp v{M}, v{M}, v{M} row_ror:{4 if k == 1 else 8} row_mask:0xf bank_mask:0xf")
    for j in range(4): e(f"v_sub_f32 v{W+j}, v{cML+2*j}, v{M}")
    e(f"v_sub_f32 v{W+4}, v{cMO}, v{M}")
    for j in range(5): e(f"v_exp_f32 v{W+j}, v{W+j}")
    e("s_nop 0")
    e(f"v_mul_f32 v{Ls}, v{W+4}, v{cLO}")
    for j in range(4): e(f"v_fmac_f32 v{Ls}, v{W+j}, v{cML+2*j+1}")
    for k in range(4): e(f"v_mul_f32 v{vS+k}, v{W+4}, v{vS+k}")
    e(f"v_add_f32_dpp v{Ls}, v{Ls}, v{Ls} row_ror:4 row_mask:0xf bank_mask:0xf")
    for j in range(4):
        for k in range(4): e(f"v_fmac_f32 v{vS+k}, v{W+j}, v{cO+4*j+k}")
        if j == 0: e(f"v_add_f32_dpp v{Ls}, v{Ls}, v{Ls} row_ror:8 row_mask:0xf bank_mask:0xf")
        if j == 1: e(f"v_rcp_f32 v{R}, v{Ls}")
        if j == 2:
            e(f"v_fma_f32 v{R+1}, -v{Ls}, v{R}, 1.0")
            e(f"v_fmac_f32 v{R}, v{R+1}, v{R}")
    for ror in (4, 8):
        for k in range(4):
            e(f"v_add_f32_dpp v{vS+k}, v{vS+k}, v{vS+k} row_ror:{ror} row_mask:0xf bank_mask:0xf")
    for k in range(4): e(f"v_mul_f32 v{vS+k}, v{vS+k}, v{R}")
    e(f"v_cvt_pk_bf16_f32 v{vS+4}, v{vS}, v{vS+1}")
    e(f"v_cvt_pk_bf16_f32 v{vS+5}, v{vS+2}, v{vS+3}")
    e("s_mov_b32 exec_lo, 0x000f000f")
    e("s_mov_b32 exec_hi, 0x000f000f")
    e(f"buffer_store_dwordx2 v[{vS+4}:{vS+5}], v{cOUT}, s[{sOUT}:{sOUT+3}], 0 offen")
    e("s_mov_b64 exec, -1")

assert N0 - 8 - NSHF + N0 - 8 >= 26 and N1 - 8 - NSHS <= NNAR and N0 - 8 - NSHF <= NNAR
hdr = ["; paged KV radix attention decode, generated by gen17.py", f"; soff={WS_O + WS_ML}",
       f"; @launch grid=({NWG},1,1) block=(512,1,1) lds={LDS_TOTAL}"]
L.append('.amdgcn_target "amdgcn-amd-amdhsa--gfx950"')
L.append(".text")
L.append(f".globl {NAME}_kernel")
L.append(".p2align 8")
L.append(f".type {NAME}_kernel,@function")
lab(f"{NAME}_kernel")
stamp(0)
e("s_load_dwordx16 s[4:19], s[0:1], 0")
e(f"s_cmp_ge_u32 s2, {NWG}")
e("s_cbranch_scc1 L_exit")
e(f"v_and_b32 v{vLANE}, 63, v0")
e(f"v_lshrrev_b32 v{vG}, 6, v0")
e(f"v_lshlrev_b32 v{vL4}, 2, v{vLANE}")
e(f"v_readfirstlane_b32 s{sW}, v{vG}")
if WARM:
    e("s_cmp_lt_u32 s2, 64")
    e("s_cbranch_scc1 L_bk")
    e("s_nop 1")
    e(f"s_cmp_eq_u32 s{sW}, 3")
    e("s_cbranch_scc1 L_st1")
    e(f"s_cmp_eq_u32 s{sW}, 2")
    e("s_cbranch_scc1 L_st2")
lab("L_bk")
e(f"v_and_b32 v{vSSO}, 31, v{vLANE}")
e(f"v_lshlrev_b32 v{vSSO}, 3, v{vSSO}")
e(f"v_lshrrev_b32 v{vBTO}, 5, v{vLANE}")
e(f"v_lshl_add_u32 v{vBTO}, v{vBTO}, 9, v{vSSO}")
e(f"v_lshrrev_b32 v{vG}, 4, v{vLANE}")
e(f"v_and_b32 v{vN}, 15, v{vLANE}")
e(f"s_and_b32 s{sHKV}, s2, 7")
e(f"s_lshr_b32 s{sITEM}, s2, 3")
e(f"s_sub_u32 s57, s2, {8*N0}")
e("s_lshr_b32 s58, s57, 1")
e(f"s_add_u32 s58, s58, {N0}")
e("s_and_b32 s57, s57, 1")
e("s_lshl_b32 s57, s57, 2")
e(f"s_mov_b32 s{sBT+2}, {8*128*4}")
e(f"s_mov_b32 s{sBT+3}, 0x00020000")
e(f"s_mov_b32 s{sCT+2}, 32")
e(f"s_mov_b32 s{sCT+3}, 0x00020000")
e(f"s_lshl_b32 s60, s{sITEM}, 9")
e("s_add_u32 s60, s60, 256")
e(f"s_cmp_lt_u32 s{sITEM}, 8")
e("s_cselect_b32 s60, s60, 0")
e("s_waitcnt lgkmcnt(0)")
stamp(1)
e(f"s_mov_b32 s{sCT}, s12")
e(f"s_and_b32 s{sCT+1}, s13, 0xffff")
e(f"s_mov_b32 s{sBT}, s10")
e(f"s_and_b32 s{sBT+1}, s11, 0xffff")
e(f"buffer_load_dword v{vCTXV}, v{vL4}, s[{sCT}:{sCT+3}], 0 offen")
e(f"buffer_load_dwordx2 v[{vSS}:{vSS+1}], v{vSSO}, s[{sBT}:{sBT+3}], s60 offen")
e("s_lshr_b32 s56, s6, 8")
e(f"s_sub_u32 s59, {SLOWC}, s56")
e("s_and_b32 s59, s59, 3")
e("s_add_u32 s59, s59, s57")
e(f"s_cmp_ge_u32 s2, {8*N0}")
e(f"s_cselect_b32 s{sHKV}, s59, s{sHKV}")
e(f"s_cselect_b32 s{sITEM}, s58, s{sITEM}")
e(f"s_add_u32 s56, s56, s{sHKV}")
e("s_and_b32 s56, s56, 3")
e(f"s_cmp_eq_u32 s56, {SLOWC}")
e(f"s_cselect_b32 s{sNSH}, {NSHS}, {NSHF}")
e(f"s_cselect_b32 s{sWB}, {32//NSHS}, {32//NSHF}")
e(f"s_cselect_b32 s{sWR}, {32%NSHS}, {32%NSHF}")
e(f"s_cselect_b32 s{sNWGH}, {N1}, {N0}")
e(f"s_cselect_b32 s61, {FS}, {FF}")
e(f"s_add_u32 s62, s{sNSH}, 8")
def issue_bt(nfw):
    e(f"s_cmp_lt_u32 s{sITEM}, s{nfw}")
    e("s_cselect_b32 s56, 0, 256")
    for j in range(4):
        e(f"buffer_load_dwordx2 v[{vR+2*j}:{vR+2*j+1}], v{vBTO}, s[{sBT}:{sBT+3}], s56 offen offset:{j*1024}")
e(f"s_cmp_lt_u32 s{sITEM}, 8")
e("s_cbranch_scc1 L_nobt")
issue_bt(62)
lab("L_nobt")
if L2W:
    e(f"s_cmp_lt_u32 s{sW}, {HW0}")
    e("s_cbranch_scc1 L_nohop")
    e("s_lshr_b32 s56, s2, 3")
    e(f"s_mul_i32 s56, s56, {8-HW0}")
    e(f"s_add_u32 s56, s56, s{sW}")
    e("s_cmp_ge_u32 s56, @NHOP@")
    e("s_cbranch_scc1 L_nohop")
    e(f"s_mul_i32 s56, s56, {LSTR}")
    e("s_getpc_b64 s[58:59]")
    lab("L_pc")
    e(f"s_add_u32 s56, s56, @FIRSTB@-(L_pc-{NAME}_kernel)")
    e("s_add_u32 s58, s58, s56")
    e("s_addc_u32 s59, s59, 0")
    e("s_mov_b64 exec, 0")
    e("s_setpc_b64 s[58:59]")
    lab("L_ret")
    e("s_mov_b64 exec, -1")
    lab("L_nohop")
e(f"s_sub_u32 s{sNPRIV}, s{sNWGH}, s62")
srd(sK, 6, KV_BYTES)
srd(sV, 8, KV_BYTES)
srd(sQ, 4, 8*32*128*2)
srd(sOUT, 14, 8*32*128*2)
srd(sDBG, 16, 256)
srd(sWS, 18, WS_O + WS_ML + 65536)
e(f"s_mov_b32 s{sF}, s61")
e(f"s_mov_b32 s{sNFW}, s62")
def region():
    e(f"s_sub_u32 s56, s{sITEM}, s{sNFW}")
    e(f"s_add_u32 s57, s56, {2*NSHMAX}")
    e(f"s_add_u32 s56, s56, {NSHMAX}")
    e(f"s_sub_u32 s59, s{sITEM}, 8")
    e(f"s_lshl_b32 s58, s59, 1")
    e(f"s_cmp_lt_u32 s{sITEM}, s{sNFW}")
    e(f"s_cselect_b32 s57, s58, s57")
    e(f"s_cselect_b32 s56, s59, s56")
    e("s_lshl_b32 s57, s57, 13")
    e("s_lshl_b32 s56, s56, 8")
    e(f"s_mul_i32 s58, s{sHKV}, {HSTR}")
    e(f"s_add_u32 s{sREG}, s57, s58")
    e(f"s_mul_i32 s58, s{sHKV}, {MLSTR}")
    e(f"s_add_u32 s56, s56, s58")
    e(f"s_add_u32 s{sMLB}, s56, {WS_O}")
region()
e(f"s_lshl_b32 s57, s{sW}, 10")
e(f"v_lshl_add_u32 v{vOUT}, v{vLANE}, 4, s57")
for k in range(4): e(f"v_mov_b32 v{vPA+k}, -1")
e(f"s_lshl_b32 s57, s{sW}, 5")
e(f"s_add_u32 s57, s57, s{sMLB}")
e(f"s_add_u32 s58, s{sREG}, 8192")
e(f"s_cmp_lt_u32 s{sITEM}, 8")
e("s_cbranch_scc1 L_init1")
e("s_mov_b64 exec, 15")
e(f"buffer_store_dwordx2 v[{vPA}:{vPA+1}], v{vSSO}, s[{sWS}:{sWS+3}], s57 offen sc1")
e("s_mov_b64 exec, -1")
e(f"buffer_store_dwordx4 v[{vPA}:{vPA+3}], v{vOUT}, s[{sWS}:{sWS+3}], s{sREG} offen sc1")
e(f"s_cmp_ge_u32 s{sITEM}, s{sNFW}")
e("s_cbranch_scc1 L_init1")
e(f"buffer_store_dwordx4 v[{vPA}:{vPA+3}], v{vOUT}, s[{sWS}:{sWS+3}], s58 offen sc1")
lab("L_init1")
e(f"s_mov_b32 s{sSIG}, s{sW}")
e(f"s_mov_b32 s{sI0}, s{sITEM}")
e(f"s_mov_b64 s[{sM8}:{sM8+1}], 0xff")
e(f"s_lshl_b32 s56, s{sHKV}, 8")
for j in range(4):
    e(f"v_add_u32 v{vT}, {4*j}, v{vG}")
    e(f"v_xor_b32 v{vT+1}, v{vT}, v{vN}")
    e(f"v_lshlrev_b32 v{vT+1}, 4, v{vT+1}")
    e(f"v_lshl_add_u32 v{vT+1}, v{vT}, 11, v{vT+1}")
    e(f"v_add_u32 v{vKO[j]}, s56, v{vT+1}")
for odd in range(2):
    vo = vVOFF1 if odd else vVOFF0
    e(f"v_add_u32 v{vT}, {4*odd}, v{vG}")
    e(f"v_lshrrev_b32 v{vT+1}, 1, v{vN}")
    e(f"v_xor_b32 v{vT+1}, v{vT+1}, v{vT}")
    e(f"v_lshlrev_b32 v{vT+1}, 1, v{vT+1}")
    e(f"v_and_b32 v{vT+2}, 1, v{vN}")
    e(f"v_or_b32 v{vT+1}, v{vT+1}, v{vT+2}")
    e(f"v_lshlrev_b32 v{vT+1}, 4, v{vT+1}")
    e(f"v_lshl_add_u32 v{vo}, v{vT}, 11, v{vT+1}")
    e(f"v_add_u32 v{vo}, s56, v{vo}")
e(f"v_mul_u32_u24 v{vMAXR}, {XS}, v{vN}")
e(f"v_add_u32 v{vMAXR}, {LDS_MAX}, v{vMAXR}")
e(f"s_lshl_b32 s57, s{sW}, 4")
e(f"v_lshl_add_u32 v{vMAXW}, v{vG}, 2, s57")
e(f"v_add_u32 v{vMAXW}, v{vMAXW}, v{vMAXR}")
e(f"s_lshl_b32 s57, s{sW}, 11")
e(f"s_add_u32 s57, s57, {LDS_P}")
e(f"v_lshl_add_u32 v{vPW}, v{vLANE}, 4, s57")
e(f"v_lshrrev_b32 v{vT}, 2, v{vN}")
e(f"v_lshl_add_u32 v{vT}, v{vG}, 2, v{vT}")
e(f"v_and_b32 v{vT+1}, 7, v{vT}")
e(f"v_and_b32 v{vT+2}, 3, v{vN}")
e(f"v_lshlrev_b32 v{vT+2}, 3, v{vT+2}")
e(f"v_lshl_add_u32 v{vT+2}, v{vT}, 8, v{vT+2}")
e(f"v_xor_b32 v{vT+3}, s{sW}, v{vT+1}")
e(f"v_lshl_add_u32 v{vTR}, v{vT+3}, 5, v{vT+2}")
e(f"v_add_u32 v{vTR2}, {LDS_B}, v{vTR}")
e(f"s_lshl_b32 s57, s{sHKV}, 10")
e(f"v_lshl_add_u32 v{vQS}, v{vG}, 8, s57")
e(f"v_mov_b32 v{vMAG}, 0x8000")
for i, m in enumerate((65536, 52429, 43691, 37450)):
    e(f"s_mov_b32 s56, {m}")
    e(f"v_writelane_b32 v{vMAG}, s56, {i}")
e(f"s_cmp_ge_u32 s{sITEM}, 8")
e("s_cbranch_scc1 L_item2")
finisher()
e("s_branch L_fin")
lab("L_item")
issue_bt(sNFW)
region()
e("s_waitcnt vmcnt(0)")
e("s_branch L_item2")
lab("L_st1")
e("s_branch L_bk")
lab("L_item2")
e(f"s_sub_u32 s58, s{sITEM}, 8")
e(f"s_cmp_lt_u32 s58, s{sWR}")
e(f"s_addc_u32 s{sCNT}, s{sWB}, 0")
e(f"s_min_u32 s56, s58, s{sWR}")
e(f"s_mul_i32 s57, s58, s{sWB}")
e(f"s_add_u32 s{sP0}, s56, s57")
e(f"v_lshrrev_b32 v{vT}, 3, v{vSSO}")
e(f"v_subrev_u32 v{vT}, s{sP0}, v{vT}")
e(f"v_cmp_gt_u32 s[{sCHK}:{sCHK+1}], s{sCNT}, v{vT}")
e(f"s_add_u32 s{sPW}, s{sP0}, s{sW}")
e(f"s_lshl_b32 s{sCOL}, s{sPW}, 1")
e(f"s_sub_u32 s{sKK}, s{sITEM}, s{sNFW}")
e(f"s_cmp_ge_u32 s{sITEM}, s{sNFW}")
e("s_cbranch_scc1 L_ptype")
e("s_waitcnt vmcnt(3)")
stamp(2)
e(f"v_readlane_b32 s{sPH0}, v{vSS}, s{sPW}")
e(f"v_readlane_b32 s{sPH1}, v{vSS+1}, s{sPW}")
e(f"v_cmp_ne_u32 vcc, v{vR}, v{vSS}")
for j in range(4):
    for h in range(2):
        if j == 0 and h == 0: continue
        e(f"v_cmp_ne_u32 s[62:63], v{vR+2*j+h}, v{vSS+h}")
        e("s_or_b64 vcc, vcc, s[62:63]")
e(f"s_and_b64 vcc, vcc, s[{sCHK}:{sCHK+1}]")
e(f"s_lshl_b32 s{sPH0}, s{sPH0}, 15")
e(f"s_lshl_b32 s{sPH1}, s{sPH1}, 15")
e("s_cbranch_vccnz L_fallback")
body(True)
e("s_branch L_tail")
lab("L_fallback")
decode_a1(); decode_a2()
e(f"s_mov_b32 s{sB}, 0")
e(f"s_mov_b32 s{sLIM}, 128")
lab("L_fbloop")
e(f"s_mov_b32 s{sBF}, s{sB}")
e("s_branch L_narrow")
lab("L_st2")
e("s_branch L_bk")
lab("L_ptype")
e("s_waitcnt vmcnt(2)")
stamp(2)
decode_a1(); decode_a2()
e(f"s_cmp_ge_u32 s{sITEM}, s{sNIT}")
e("s_cbranch_scc1 L_inact")
e(f"s_cmp_ge_u32 s{sKK}, s{sC0}")
e(f"s_cselect_b32 s56, s{sC0}, 0")
e(f"s_cselect_b32 s57, s{sG1}, s{sG0}")
e(f"s_cselect_b32 s{sHM}, 0xf0, s{sHM}")
e(f"s_sub_u32 s{sKK}, s{sKK}, s56")
e(f"s_mul_i32 s56, s{sKK}, s{sSZ}")
e(f"s_add_u32 s59, s56, s{sW}")
e(f"v_cmp_lt_u32 vcc, s59, v{dEN}")
e(f"v_cmp_lt_u32 s[60:61], s56, v{dEN}")
e("s_sub_u32 s57, s57, s56")
e(f"s_min_u32 s{sCNT}, s57, s{sSZ}")
e(f"s_and_b32 s58, s{sHM}, vcc_lo")
e(f"s_ff1_i32_b32 s{sB}, s58")
e(f"s_and_b32 s{sB}, s{sB}, 7")
e(f"s_and_b32 s60, s{sHM}, s60")
e(f"s_ff1_i32_b32 s{sBF}, s60")
e(f"v_readlane_b32 s57, v{dE}, s{sB}")
e(f"v_readlane_b32 s{sLIM}, v{dNB}, s{sB}")
e("s_nop 3")
e(f"s_sub_u32 s{sPW}, s59, s57")
e(f"s_lshl_b32 s{sCOL}, s{sPW}, 1")
e(f"s_add_u32 s{sCOL}, s{sCOL}, 64")
lab("L_narrow")
e(f"s_and_b32 s56, s{sB}, 1")
e("s_lshl_b32 s56, s56, 5")
e(f"s_add_u32 s56, s56, s{sPW}")
e("s_and_b32 s56, s56, 63")
e(f"v_readlane_b32 s{sPH0}, v{vR}, s56")
e(f"v_readlane_b32 s{sPH1}, v{vR+1}, s56")
for j in range(1, 4):
    e(f"v_readlane_b32 s{58+2*j}, v{vR+2*j}, s56")
    e(f"v_readlane_b32 s{59+2*j}, v{vR+2*j+1}, s56")
e(f"v_readlane_b32 s{sCTXB}, v{vCTXV}, s{sB}")
e(f"s_lshr_b32 s57, s{sB}, 1")
e(f"s_add_u32 s58, s{sCOL}, 1")
e("s_nop 2")
for j in range(1, 4):
    e(f"s_cmp_eq_u32 s57, {j}")
    e(f"s_cselect_b32 s{sPH0}, s{58+2*j}, s{sPH0}")
    e(f"s_cselect_b32 s{sPH1}, s{59+2*j}, s{sPH1}")
e(f"s_cmp_lt_u32 s58, s{sLIM}")
e(f"s_cselect_b32 s{sPH1}, s{sPH1}, s{sPH0}")
e(f"s_lshl_b32 s{sPH0}, s{sPH0}, 15")
e(f"s_lshl_b32 s{sPH1}, s{sPH1}, 15")
body(False)
e(f"s_cmp_ge_u32 s{sITEM}, s{sNFW}")
e("s_cbranch_scc1 L_tail")
e(f"s_add_u32 s{sB}, s{sB}, 1")
e(f"s_cmp_ge_u32 s{sB}, 8")
e("s_cbranch_scc1 L_tail")
e("s_waitcnt vmcnt(0) lgkmcnt(0)")
e("s_barrier")
e("s_branch L_fbloop")
lab("L_tail")
stamp(5)
e(f"s_add_u32 s{sITEM}, s{sITEM}, s{sNWGH}")
e(f"s_sub_u32 s{sITEM}, s{sITEM}, 8")
e(f"s_cmp_ge_u32 s{sITEM}, s{sNIT}")
e("s_cbranch_scc1 L_fin")
e("s_waitcnt vmcnt(0) lgkmcnt(0)")
e("s_barrier")
e("s_branch L_item")
lab("L_inact")
signal("x")
lab("L_fin")
stamp(7)
stamp_flush(8)
lab("L_exit")
e("s_endpgm")
L.append('.section .rodata,"a"')
L.append(".p2align 6")
L.append(f".amdhsa_kernel {NAME}_kernel")
L.append(f"  .amdhsa_next_free_vgpr {NVGPR}")
L.append("  .amdhsa_next_free_sgpr 102")
L.append(f"  .amdhsa_accum_offset {NVGPR}")
L.append("  .amdhsa_group_segment_fixed_size 0")
L.append("  .amdhsa_kernarg_size 64")
L.append("  .amdhsa_user_sgpr_count 2")
L.append("  .amdhsa_user_sgpr_kernarg_segment_ptr 1")
L.append("  .amdhsa_system_sgpr_workgroup_id_x 1")
L.append(".end_amdhsa_kernel")
assert OUTP
def sizes(lines):
    import subprocess, re
    open("p1.s", "w").write("\n".join(lines) + "\n")
    subprocess.check_call(["clang", "-x", "assembler", "-target", "amdgcn-amd-amdhsa", "-mcpu=gfx950", "-c", "p1.s", "-o", "p1.o"])
    d = subprocess.check_output(["llvm-objdump", "-d", "p1.o"]).decode()
    r = []
    for ln in d.splitlines():
        m = re.search(r"// ([0-9A-F]{12}): ((?:[0-9A-F]{8} ?)+)", ln)
        if m: r.append(4*len(m.group(2).split()))
    return r
if L2W:
    P1 = [x.replace("@NHOP@", "1000").replace("@FIRSTB@", "4096") for x in L]
    sz = sizes(P1)
    isins = [x.startswith("    ") for x in L]
    assert sum(isins) == len(sz), (sum(isins), len(sz))
    atoms = []; k = 0; cur = None
    for x, ii in zip(L, isins):
        n = 0
        if ii: n = sz[k]; k += 1
        t = x.strip()
        wr = ii and (t.startswith("s_mov_b64 exec,") or " exec_lo," in t or " exec_hi," in t)
        if cur is not None:
            cur[0].append(x); cur[1] += n
            if t == "s_mov_b64 exec, -1": atoms.append(cur); cur = None
        elif wr and t != "s_mov_b64 exec, -1":
            cur = [[x], n]
        else:
            atoms.append([[x], n])
    assert cur is None
    N = []; off = 0; first = None; npad = 0; seen_ret = False
    for lines, n in atoms:
        if n and seen_ret:
            assert n <= LSTR - 4
            if off % LSTR and (off % LSTR) + n > LSTR:
                while off % LSTR: N.append("    s_nop 0"); off += 4; npad += 1
            if off % LSTR == 0:
                N.append("    s_cbranch_execz L_ret");
                if first is None: first = off
                last = off
                off += 4
        N += lines; off += n
        if "L_init1:" in lines: seen_ret = True
    nl = (last - first)//LSTR + 1
    print("code bytes", off, "lines", nl, "first", first, "pad", npad)
    assert nl + HW0 > 64
    L = [x.replace("@NHOP@", str(nl + HW0)).replace("@FIRSTB@", str(first - HW0*LSTR + 65536) + "-65536") for x in N]
out = "\n".join(hdr + L) + "\n"
open(OUTP, "w").write(out)
print("ok", len(L), "lds", LDS_TOTAL, "soff", WS_O + WS_ML)
```

```python
import sys, struct
STAMP = False; NT = ' nt'; OUTP = None; N0 = 29; SLOWC = 1; NSHF = 6; NSHS = 8; LIMIT = 1 << 20
DBGST = 0; VBL = 0; PRIO = 0; DIAG = 0; KBL = 0; CPF = 0; CPS = 6; WARM = 1; L2W = 0; LSTR = 128; HW0 = 4; FF = 13; FS = 11; SW = 1; PFF = 0; PFS = 0
for a in sys.argv[1:]:
    if a == 'stamp': STAMP = True
    if a == 'nowarm': WARM = 0
    if a == 'nol2w': L2W = 0
    if a == 'l2w': L2W = 1
    if a == 'dbgst': DBGST = 1
    if a.startswith('vbl='): VBL = int(a[4:])
    if a.startswith('prio='): PRIO = int(a[5:])
    if a == 'diag': DIAG = 1
    if a == 'diag2': DIAG = 2
    if a.startswith('kbl='): KBL = int(a[4:])
    if a.startswith('cpf='): CPF = int(a[4:])
    if a.startswith('cps='): CPS = int(a[4:])
    if a.startswith('lstr='): LSTR = int(a[5:])
    if a.startswith('hw0='): HW0 = int(a[4:])
    if a.startswith('o='): OUTP = a[2:]
    if a.startswith('slowc='): SLOWC = int(a[6:])
    if a.startswith('n0='): N0 = int(a[3:])
    if a.startswith('nshf='): NSHF = int(a[5:])
    if a.startswith('nshs='): NSHS = int(a[5:])
    if a.startswith('ff='): FF = int(a[3:])
    if a.startswith('fs='): FS = int(a[3:])
    if a.startswith('sw='): SW = int(a[3:])
    if a.startswith('pff='): PFF = int(a[4:])
    if a.startswith('pfs='): PFS = int(a[4:])
    if a.startswith('limit='): LIMIT = int(a[6:])
NAME = "standalone__paged_block_table_kv_radixattention__sampling"
L = []
def e(s=""): L.append("    " + s)
def lab(s): L.append(s + ":")
def f2u(f): return struct.unpack('<I', struct.pack('<f', f))[0]

NW = 8
NWG = 256
KV_BYTES = 576*32768
NSHMAX = max(NSHF, NSHS)
assert 8 <= FF <= 15 and 8 <= FS <= 15 and 4 <= min(NSHF, NSHS) and NSHMAX <= 8
N1 = (256 - 6*N0)//2
NNAR = 32
HSTR = (2*NSHMAX + NNAR)*8192
MLSTR = (NSHMAX + NNAR)*256
WS_O = 8*HSTR
WS_ML = 8*MLSTR
LDS_B = 65536
LDS_P = 131072
LDS_Q = LDS_P
LDS_MAX = LDS_P + NW*2048
XS = 144
LDS_SUM = LDS_MAX + 32*XS
LDS_FLAG = LDS_SUM + 32*XS
LDS_TOTAL = LDS_FLAG + 64
SCALE = (128 ** -0.5) * 1.4426950408889634
MASKV = -1e9 * 1.4426950408889634

sQ, sK, sV, sBT, sOUT, sDBG, sWS, sCT = 20, 24, 28, 32, 36, 40, 44, 84
sHKV, sITEM, sB, sW, sCNT, sCOL, sEXP, sNIT = 48, 49, 50, 51, 52, 53, 54, 55
sC8 = 101
sPH0, sPH1, sPH2, sPH3 = 82, 83, 64, 65
sP0, sLIM, sCTXB, sNSH = 88, 89, 90, 91
sM8, sCHK = 92, 94
sNPRIV, sNWGH, sGOT, sKK, sMAG, sPRES = 96, 97, 98, 99, 100, 101
sSTM = 4
sPW = 6
sG0, sG1, sSZ, sC0, sHM, sBF, sWB, sWR = 7, 8, 9, 10, 11, 3, 0, 1
sREG, sMLB, sSIG, sF, sNFW, sI0 = 12, 13, 14, 15, 16, 17
sEM = 12
vLANE, vG, vN = 1, 2, 3
vKO = [4, 7, 12, 0]
vVOFF0, vVOFF1 = 5, 6
vMAXW, vMAXR, vPW, vTR, vOUT, vMASK, vQS = 8, 9, 10, 11, 13, 14, 15
vK, vQ, vS = 16, 48, 80
vCTX, vM, vL = 96, 98, 100
vML = 102
vP = 104
vT = 112
vPOS = vT + 31
vPA = 144
vVA = 208
vR, vSS, vCTXV, vTR2, vBTO, vL4, vSSO, vMAG = 240, 248, 250, 251, 252, 253, 254, 255
cOA, cMA, cOUT, vCV, cMO, cLO, cKA = 64, 68, 72, 73, 74, 75, 76
cO, cML, cW = 16, 32, 40
vXM, vFLA = 240, 241
NVGPR = 256

def stamp(i):
    if STAMP: e(f"s_memrealtime s[{66+2*i}:{67+2*i}]")
def stamp_flush(n):
    if not STAMP: return
    e("s_waitcnt lgkmcnt(0)")
    e(f"s_cmp_lg_u32 s{sW}, {SW}")
    e("s_cbranch_scc1 L_nostamp")
    e("s_lshl_b32 s56, s2, 6")
    e(f"s_add_u32 s56, s56, {WS_O + WS_ML}")
    e("v_mov_b32 v60, s56")
    for i in range(n):
        e(f"v_mov_b32 v61, s{66+2*i}")
        e(f"buffer_store_dword v61, v60, s[{sWS}:{sWS+3}], 0 offen offset:{4*i}")
        e("s_nop 1")
    if DBGST:
        e("s_cmp_ge_u32 s2, 8")
        e("s_cbranch_scc1 L_nostamp")
        e("s_lshl_b32 s56, s2, 2")
        e("v_mov_b32 v60, s56")
        e("s_mov_b64 exec, 1")
        e("v_mov_b32 v61, s66")
        e(f"buffer_store_dword v61, v60, s[{sDBG}:{sDBG+3}], 0 offen")
        e("s_nop 1")
        e("v_mov_b32 v61, s80")
        e(f"buffer_store_dword v61, v60, s[{sDBG}:{sDBG+3}], 0 offen offset:32")
    lab("L_nostamp")

def srd(base, lo, nbytes):
    e(f"s_mov_b32 s{base}, s{lo}")
    e(f"s_and_b32 s{base+1}, s{lo+1}, 0xffff")
    e(f"s_mov_b32 s{base+2}, {nbytes}")
    e(f"s_mov_b32 s{base+3}, 0x00020000")

dNB, dNP, dIN, dA, dBt, dE, dEN, dC = vT+16, vT+17, vT+18, vT+19, vT+20, vT+21, vT+22, vT+23
dNQ, dNC = vT+14, vT+15
def decode_a1():
    e(f"v_add_u32 v{dA}, 15, v{vCTXV}")
    e(f"v_add_u32 v{dBt}, -1, v{vCTXV}")
    e(f"v_cmp_gt_u32 vcc, 0x800, v{dBt}")
    e(f"v_lshrrev_b32 v{dA}, 4, v{dA}")
    e(f"v_mov_b32 v{dNB}, 0x80")
    e("s_nop 0")
    e(f"v_cndmask_b32 v{dNB}, v{dNB}, v{dA}, vcc")
    e(f"v_subrev_u32 v{dA}, 63, v{dNB}")
    e(f"v_max_i32 v{dA}, 0, v{dA}")
    e(f"v_lshrrev_b32 v{dNQ}, 1, v{dA}")
    e(f"v_subrev_u32 v{dA}, s{sF}, v{dNQ}")
    e(f"v_max_i32 v{dA}, 0, v{dA}")
def decode_a2():
    e(f"v_cndmask_b32 v{dNP}, 0, v{dA}, s[{sM8}:{sM8+1}]")
    e(f"v_cndmask_b32 v{dIN}, 0, v{dA}, s[{sM8}:{sM8+1}]")
    e(f"v_cmp_gt_u32 s[58:59], 3, v{dA}")
    e("s_nop 0")
    for sh in (1, 2, 4):
        e(f"v_add_u32_dpp v{dIN}, v{dIN}, v{dIN} row_shr:{sh} row_mask:0xf bank_mask:0xf bound_ctrl:0")
        e("s_nop 1")
    e(f"v_readlane_b32 s{sG0}, v{dIN}, 3")
    e(f"v_readlane_b32 s{sG1}, v{dIN}, 7")
    e(f"v_cmp_lt_u32 vcc, 3, v{vLANE}")
    e("s_nop 2")
    e("s_and_b32 s58, s58, 0x7e")
    e(f"s_cselect_b32 s57, s{sG0}, 0")
    e(f"s_cselect_b32 s{sG0}, s{sG0}, s{sG1}")
    e(f"s_cselect_b32 s{sHM}, 15, 0xff")
    e(f"s_sub_u32 s{sG1}, s{sG1}, s{sG0}")
    e(f"v_mov_b32 v{dA}, s57")
    e(f"v_cndmask_b32 v{dA}, 0, v{dA}, vcc")
    e(f"v_add3_u32 v{dBt}, s{sG0}, v{vLANE}, 3")
    e(f"v_add3_u32 v{dC}, s{sG1}, v{vLANE}, 3")
    e(f"v_mul_u32_u24 v{dBt}, v{dBt}, v{vMAG}")
    e(f"v_mul_u32_u24 v{dC}, v{dC}, v{vMAG}")
    e(f"v_lshrrev_b32 v{dBt}, 18, v{dBt}")
    e(f"v_lshrrev_b32 v{dC}, 18, v{dC}")
    e(f"v_add_u32 v{dC}, v{dC}, v{dBt}")
    e(f"v_cmp_ge_u32 vcc, s{sNPRIV}, v{dC}")
    e(f"v_sub_u32 v{dEN}, v{dIN}, v{dA}")
    e(f"v_sub_u32 v{dE}, v{dEN}, v{dNP}")
    e("s_or_b32 s56, vcc_lo, 16")
    e("s_ff1_i32_b32 s56, s56")
    e(f"v_readlane_b32 s{sC0}, v{dBt}, s56")
    e(f"v_readlane_b32 s{sNIT}, v{dC}, s56")
    e(f"v_readlane_b32 s{sMAG}, v{vMAG}, s56")
    e(f"s_add_u32 s{sSZ}, s56, 4")
    e("s_nop 2")
    e(f"s_add_u32 s{sNIT}, s{sNIT}, s{sNFW}")
def decode_b():
    e(f"v_mul_u32_u24 v{dA}, s{sMAG}, v{dE}")
    e(f"v_add_u32 v{dBt}, -1, v{dEN}")
    e(f"v_max_i32 v{dBt}, 0, v{dBt}")
    e(f"v_mul_u32_u24 v{dBt}, s{sMAG}, v{dBt}")
    e(f"v_lshrrev_b32 v{dA}, 18, v{dA}")
    e(f"v_lshrrev_b32 v{dBt}, 18, v{dBt}")

def kdma(ph, slot_off):
    e(f"s_lshl_b32 s60, s{sW}, 13")
    for i in range(8):
        e(f"s_add_u32 m0, s60, {slot_off + i*1024}")
        e("s_nop 0")
        e(f"buffer_load_dwordx4 v{vKO[i&3]}, s[{sK}:{sK+3}], s{ph[i>>2]} offen{NT} lds")
def vdma(ph, slot_off):
    e(f"s_lshl_b32 s60, s{sW}, 13")
    for i in range(8):
        t = i >> 2; hi = (i >> 1) & 1; odd = i & 1
        e(f"s_add_u32 s59, s{ph[t]}, {hi*16384}")
        e(f"s_add_u32 m0, s60, {slot_off + i*1024}")
        e("s_nop 0")
        e(f"buffer_load_dwordx4 v{vVOFF1 if odd else vVOFF0}, s[{sV}:{sV+3}], s59 offen{NT} lds")
def kread(KA, vK=vK):
    for s in range(4):
        for kt in range(2):
            r = vK + kt*16 + s*4
            e(f"ds_read_b128 v[{r}:{r+3}], v{KA+s} offset:{kt*4096}")
def qdma(wide, tag):
    if not wide:
        e(f"s_cmp_ge_u32 s{sW}, 4")
        e(f"s_cbranch_scc1 L_noq_{tag}")
    e(f"s_and_b32 s56, s{sW}, 3")
    e("s_lshl_b32 s56, s56, 2")
    e(f"v_add_u32 v{vT+30}, s56, v{vG}")
    e(f"v_xor_b32 v{vT+30}, v{vT+30}, v{vN}")
    e(f"v_lshl_add_u32 v{vT+30}, v{vT+30}, 4, v{vQS}")
    if wide:
        e(f"s_lshl_b32 s56, s{sW}, 13")
    else:
        e(f"s_sub_u32 s56, s{sW}, s{sBF}")
        e("s_and_b32 s56, s56, 3")
        e(f"s_add_u32 s56, s56, s{sBF}")
        e("s_min_u32 s56, s56, 7")
        e(f"s_lshl_b32 s56, s56, 13")
    e(f"s_lshl_b32 s57, s{sW}, 10")
    e(f"s_add_u32 m0, s57, {LDS_Q}")
    e("s_nop 0")
    e(f"buffer_load_dwordx4 v{vT+30}, s[{sQ}:{sQ+3}], s56 offen lds")
    if not wide: lab(f"L_noq_{tag}")
def qk_addrs(QA, KA):
    e(f"s_lshl_b32 s57, s{sW}, 13")
    for s in range(4):
        e(f"v_add_u32 v{QA+s}, {4*s}, v{vG}")
        e(f"v_xor_b32 v{QA+s}, v{QA+s}, v{vN}")
        e(f"v_lshlrev_b32 v{QA+s}, 4, v{QA+s}")
        e(f"v_lshl_add_u32 v{QA+s}, v{vN}, 8, v{QA+s}")
        e(f"v_add_u32 v{KA+s}, s57, v{QA+s}")
        e(f"v_add_u32 v{QA+s}, {LDS_Q}, v{QA+s}")
def narrow_mask():
    e(f"s_and_b32 s56, s{sB}, 3")
    e(f"v_lshrrev_b32 v{vT+28}, 2, v{vN}")
    e(f"v_cmp_eq_u32 vcc, s56, v{vT+28}")
    e(f"v_mov_b32 v{vT+28}, s{sCTXB}")
    e(f"v_mov_b32 v{vT+29}, {f2u(MASKV):#x}")
    e(f"v_mov_b32 v{vCTX}, 0xc0000000")
    e(f"v_mov_b32 v{vMASK}, 0xff800000")
    e(f"v_cndmask_b32 v{vCTX}, v{vCTX}, v{vT+28}, vcc")
    e(f"v_cndmask_b32 v{vMASK}, v{vMASK}, v{vT+29}, vcc")
def scale_mask(qt, lim):
    for kt in range(2):
        for i in range(4):
            r = vS + (kt*2+qt)*4 + i
            e(f"v_cmp_lt_i32 vcc, {kt*16+i}, v{lim}")
            e(f"v_mul_f32 v{r}, s56, v{r}")
            e("s_nop 0")
            e(f"v_cndmask_b32 v{r}, v{vMASK}, v{r}, vcc")
def max8(dst, qt, first=True):
    a = vS + qt*4; b = vS + (2+qt)*4
    if first:
        e(f"v_max3_f32 v{dst}, v{a}, v{a+1}, v{a+2}")
        e(f"v_max3_f32 v{dst}, v{dst}, v{a+3}, v{b}")
        e(f"v_max3_f32 v{dst}, v{dst}, v{b+1}, v{b+2}")
        e(f"v_max_f32 v{dst}, v{dst}, v{b+3}")
    else:
        e(f"v_max3_f32 v{dst}, v{dst}, v{a}, v{a+1}")
        e(f"v_max3_f32 v{dst}, v{dst}, v{a+2}, v{a+3}")
        e(f"v_max3_f32 v{dst}, v{dst}, v{b}, v{b+1}")
        e(f"v_max3_f32 v{dst}, v{dst}, v{b+2}, v{b+3}")
def maxread(nq):
    for qt in range(nq):
        for j in range(8):
            e(f"ds_read_b128 v[{vT+4*j}:{vT+4*j+3}], v{vMAXR} offset:{qt*16*XS+16*j}")
        e("s_waitcnt lgkmcnt(0)")
        e(f"v_max3_f32 v{vM+qt}, v{vT}, v{vT+1}, v{vT+2}")
        for j in range(3, 31, 2):
            e(f"v_max3_f32 v{vM+qt}, v{vM+qt}, v{vT+j}, v{vT+j+1}")
        e(f"v_max_f32 v{vM+qt}, v{vM+qt}, v{vT+31}")
def exp_p(qts, mreg):
    for qt in qts:
        for kt in range(2):
            for i in range(4):
                r = vS + (kt*2+qt)*4 + i
                e(f"v_sub_f32 v{r}, v{r}, v{mreg(qt)}")
    for qt in qts:
        for kt in range(2):
            for i in range(4):
                r = vS + (kt*2+qt)*4 + i
                e(f"v_exp_f32 v{r}, v{r}")
    e("s_nop 0")
    for qt in qts:
        a = vS + qt*4; b = vS + (2+qt)*4
        e(f"v_add_f32 v{vL+qt}, v{a}, v{a+1}")
        e(f"v_add_f32 v{vT}, v{a+2}, v{a+3}")
        e(f"v_add_f32 v{vT+1}, v{b}, v{b+1}")
        e(f"v_add_f32 v{vT+2}, v{b+2}, v{b+3}")
        e(f"v_add_f32 v{vL+qt}, v{vL+qt}, v{vT}")
        e(f"v_add_f32 v{vT+1}, v{vT+1}, v{vT+2}")
        e(f"v_add_f32 v{vL+qt}, v{vL+qt}, v{vT+1}")
        p = vP + qt*4
        e(f"v_cvt_pk_bf16_f32 v{p}, v{a}, v{a+1}")
        e(f"v_cvt_pk_bf16_f32 v{p+1}, v{a+2}, v{a+3}")
        e(f"v_cvt_pk_bf16_f32 v{p+2}, v{b}, v{b+1}")
        e(f"v_cvt_pk_bf16_f32 v{p+3}, v{b+2}, v{b+3}")
        e(f"ds_write_b128 v{vPW}, v[{p}:{p+3}] offset:{qt*1024}")
def pread(nq):
    e(f"v_lshlrev_b32 v{vP}, 4, v{vLANE}")
    e(f"v_add_u32 v{vP}, {LDS_P}, v{vP}")
    for w2 in range(NW):
        for qt in range(nq):
            r = vPA + (w2*2+qt)*4
            e(f"ds_read_b128 v[{r}:{r+3}], v{vP} offset:{w2*2048 + qt*1024}")
def lsum(qt):
    for j in range(8):
        e(f"ds_read_b128 v[{vT+4*j}:{vT+4*j+3}], v{vMAXR} offset:{qt*16*XS+16*j + LDS_SUM - LDS_MAX}")
    e("s_waitcnt lgkmcnt(0)")
    st = 1
    while st < 32:
        for j in range(0, 32, 2*st):
            e(f"v_add_f32 v{vT+j}, v{vT+j}, v{vT+j+st}")
        st *= 2
def trread(tr):
    for w2 in range(NW):
        r = vVA + w2*4
        e(f"ds_read_b64_tr_b16 v[{r}:{r+1}], v{tr} offset:{w2*8192}")
        e(f"ds_read_b64_tr_b16 v[{r+2}:{r+3}], v{tr} offset:{w2*8192+4096}")

def pv_pre(cnt, tag, waits):
    if waits is None:
        for k in range(1, 8):
            e(f"s_cmp_le_i32 s{cnt}, {k}")
            e(f"s_cbranch_scc1 L_pr{k}_{tag}")
        return
    for k in range(8, 1, -1):
        e(f"s_cmp_ge_i32 s{cnt}, {k}")
        e(f"s_cbranch_scc1 L_pb{k}_{tag}")
    for k in range(1, 9):
        lab(f"L_pb{k}_{tag}")
        for x in waits: x() if callable(x) else e(x)
        e("s_barrier")
        if k < 8: e(f"s_branch L_pr{k}_{tag}")
def pv(tr, cnt, qts, tag, acc):
    for k in range(8, 0, -1):
        w2 = k - 1
        lab(f"L_pr{k}_{tag}")
        r = vVA + w2*4
        e(f"ds_read_b64_tr_b16 v[{r}:{r+1}], v{tr} offset:{w2*8192}")
        e(f"ds_read_b64_tr_b16 v[{r+2}:{r+3}], v{tr} offset:{w2*8192+4096}")
    for k in range(1, 8):
        e(f"s_cmp_le_i32 s{cnt}, {k}")
        e(f"s_cbranch_scc1 L_pm{k}_{tag}")
    for k in range(8, 0, -1):
        w2 = k - 1
        lab(f"L_pm{k}_{tag}")
        e(f"s_waitcnt lgkmcnt({2*w2})")
        for qt in qts:
            d = acc(qt); a = vVA + w2*4; b = vPA + (w2*2+qt)*4
            e(f"v_mfma_f32_16x16x32_bf16 v[{d}:{d+3}], v[{a}:{a+3}], v[{b}:{b+3}], v[{d}:{d+3}]")
def qk(qts, kreg, qreg):
    for s in range(4):
        for kt in range(2):
            for qt in qts:
                d = vS + (kt*2+qt)*4; a = kreg + kt*16 + s*4; b = qreg(qt) + s*4
                c = "0" if s == 0 else f"v[{d}:{d+3}]"
                e(f"v_mfma_f32_16x16x32_bf16 v[{d}:{d+3}], v[{a}:{a+3}], v[{b}:{b+3}], {c}")

def signal(tag):
    e(f"s_cmp_lg_u32 s{sSIG}, 7")
    e(f"s_cbranch_scc1 L_nosig_{tag}")
    e(f"v_mov_b32 v{vML}, 1")
    e("s_mov_b64 exec, 1")
    e(f"buffer_store_byte v{vML}, off, s[{sDBG}:{sDBG+3}], s2 sc1")
    e("s_mov_b64 exec, -1")
    lab(f"L_nosig_{tag}")

def body(wide):
    nq = 2 if wide else 1
    tag = "W" if wide else "N"
    QA = vT + 24; KA = vT + 8
    qdma(wide, tag)
    e(f"s_cmp_ge_u32 s{sW}, s{sCNT}")
    e(f"s_cbranch_scc1 L_nok_{tag}")
    kdma([sPH0, sPH1], 0)
    lab(f"L_nok_{tag}")
    if wide:
        decode_a1(); decode_a2()
    else:
        e(f"s_cmp_lt_u32 s{sITEM}, s{sNFW}")
        e("s_cbranch_scc1 L_fbslot")
        decode_b()
        e(f"v_cmp_ge_u32 vcc, s{sKK}, v{dA}")
        e(f"v_cmp_le_u32 s[56:57], s{sKK}, v{dBt}")
        e(f"v_cmp_lt_u32 s[58:59], 0, v{dNP}")
        e(f"s_mov_b32 s{sPRES}, 0")
        e("s_nop 0")
        e("s_and_b32 s56, s56, vcc_lo")
        e("s_and_b32 s56, s56, s58")
        e(f"s_and_b32 s62, s56, s{sHM}")
        e("s_branch L_slotdone")
        lab("L_fbslot")
        e(f"s_lshl_b32 s62, 1, s{sB}")
        e(f"s_lshr_b32 s{sPRES}, s{sB}, 2")
        lab("L_slotdone")
        e("s_lshr_b32 s63, s62, 4")
        e("s_or_b32 s62, s62, s63")
        e(f"v_lshrrev_b32 v{vT+28}, 2, v{vN}")
        e(f"v_lshrrev_b32 v{vT+28}, v{vT+28}, s62")
        e(f"v_and_b32 v{vT+28}, 1, v{vT+28}")
        e(f"v_cmp_ne_u32 s[{sSTM}:{sSTM+1}], 0, v{vT+28}")
    NI = 0
    e(f"s_add_u32 s56, s{sI0}, s{sNWGH}")
    e("s_sub_u32 s56, s56, 8")
    e(f"s_cmp_ge_u32 s56, s{sNIT}")
    e(f"s_cbranch_scc1 L_no2_{tag}")
    e(f"s_cmp_lg_u32 s{sSIG}, s{sW}")
    e(f"s_cbranch_scc1 L_no2_{tag}")
    e(f"s_sub_u32 s56, s56, s{sNFW}")
    e(f"s_add_u32 s57, s56, {2*NSHMAX}")
    e("s_lshl_b32 s57, s57, 13")
    e(f"s_mul_i32 s58, s{sHKV}, {HSTR}")
    e("s_add_u32 s57, s57, s58")
    e(f"s_add_u32 s56, s56, {NSHMAX}")
    e("s_lshl_b32 s56, s56, 8")
    e(f"s_mul_i32 s58, s{sHKV}, {MLSTR}")
    e("s_add_u32 s56, s56, s58")
    e(f"s_add_u32 s56, s56, {WS_O}")
    for k in range(4): e(f"v_mov_b32 v{vPA+k}, -1")
    e(f"buffer_store_dwordx4 v[{vPA}:{vPA+3}], v{vOUT}, s[{sWS}:{sWS+3}], s57 offen sc1")
    e("s_mov_b64 exec, 0xffff")
    e(f"buffer_store_dwordx2 v[{vPA}:{vPA+1}], v{vSSO}, s[{sWS}:{sWS+3}], s56 offen sc1")
    e("s_mov_b64 exec, -1")
    e("s_waitcnt vmcnt(0)")
    lab(f"L_no2_{tag}")
    e(f"s_cmp_ge_u32 s{sW}, s{sCNT}")
    e(f"s_cbranch_scc1 L_idle1_{tag}")
    e(f"s_lshl_b32 s57, s{sCOL}, 4")
    e(f"v_lshl_add_u32 v{vPOS}, v{vG}, 2, s57")
    if wide:
        e(f"v_and_b32 v{vT+28}, 12, v{vN}")
        e(f"v_add_u32 v{vT+29}, 16, v{vT+28}")
        e(f"ds_bpermute_b32 v{vCTX}, v{vT+28}, v{vCTXV}")
        e(f"ds_bpermute_b32 v{vCTX+1}, v{vT+29}, v{vCTXV}")
        e(f"v_mov_b32 v{vMASK}, {f2u(MASKV):#x}")
    else:
        narrow_mask()
    qk_addrs(QA, KA)
    e(f"s_waitcnt vmcnt({8+NI})")
    e("s_barrier")
    signal(tag + "a")
    vdma([sPH0, sPH1], LDS_B)
    for qt in range(nq):
        for s in range(4):
            r = vQ + qt*16 + s*4
            e(f"ds_read_b128 v[{r}:{r+3}], v{QA+s} offset:{qt*4096}")
    e(f"s_waitcnt vmcnt({8+NI}) lgkmcnt(0)")
    stamp(3)
    kread(KA)
    for qt in range(nq):
        e(f"v_sub_u32 v{vT+qt}, v{vCTX+qt}, v{vPOS}")
    e(f"s_mov_b32 s56, {f2u(SCALE):#x}")
    e("s_waitcnt lgkmcnt(0)")
    qk(range(nq), vK, lambda qt: vQ + qt*16)
    e("s_nop 7")
    for qt in range(nq): scale_mask(qt, vT+qt)
    for qt in range(nq): max8(vM+qt, qt)
    e(f"s_branch L_maxw_{tag}")
    lab(f"L_idle1_{tag}")
    e("s_waitcnt vmcnt(0)")
    e("s_barrier")
    signal(tag + "b")
    for qt in range(nq):
        e(f"v_mov_b32 v{vM+qt}, 0xff800000")
    lab(f"L_maxw_{tag}")
    for qt in range(nq):
        e(f"ds_write_b32 v{vMAXW}, v{vM+qt} offset:{qt*16*XS}")
    e("s_waitcnt lgkmcnt(0)")
    e("s_barrier")
    e(f"s_mov_b32 s{sSIG}, 99")
    maxread(nq)
    e(f"s_cmp_ge_u32 s{sW}, s{sCNT}")
    e(f"s_cbranch_scc1 L_idle2_{tag}")
    exp_p(range(nq), lambda qt: vM + qt)
    e(f"s_branch L_sumw_{tag}")
    lab(f"L_idle2_{tag}")
    for qt in range(nq):
        e(f"v_mov_b32 v{vL+qt}, 0")
    lab(f"L_sumw_{tag}")
    for qt in range(nq):
        e(f"ds_write_b32 v{vMAXW}, v{vL+qt} offset:{qt*16*XS + LDS_SUM - LDS_MAX}")
    e("s_waitcnt lgkmcnt(0)")
    e("s_barrier")
    pread(nq)
    for k in range(4*nq): e(f"v_mov_b32 v{vS+k}, 0")
    if wide:
        e(f"s_add_u32 s63, s{sREG}, 8192")
    else:
        e(f"s_lshl_b32 s63, s{sPRES}, 13")
        e(f"s_add_u32 s63, s63, s{sREG}")
        e(f"s_lshl_b32 s60, s{sPRES}, 7")
        e(f"s_add_u32 s60, s60, s{sMLB}")
    e(f"s_cmp_lg_u32 s{sW}, 7")
    e(f"s_cbranch_scc1 L_nosum_{tag}")
    for qt in range(nq):
        lsum(qt)
        e(f"v_min_u32 v{vML+4*qt}, -2, v{vM+qt}")
        e(f"v_min_u32 v{vML+4*qt+1}, -2, v{vT}")
    if wide: e("s_mov_b64 exec, 0xffff")
    else:
        e(f"s_and_b32 exec_lo, s{sSTM}, 0xffff")
        e("s_mov_b32 exec_hi, 0")
    for qt in range(nq):
        so = f"s{sMLB}" if wide else "s60"
        e(f"buffer_store_dwordx2 v[{vML+4*qt}:{vML+4*qt+1}], v{vSSO}, s[{sWS}:{sWS+3}], {so} offen offset:{qt*128} sc1")
    e("s_mov_b64 exec, -1")
    e(f"s_waitcnt vmcnt({nq})")
    e(f"s_branch L_vbar_{tag}")
    lab(f"L_nosum_{tag}")
    e("s_waitcnt vmcnt(0)")
    lab(f"L_vbar_{tag}")
    stamp(4)
    pv_pre(sCNT, tag, ["s_waitcnt lgkmcnt(0)"])
    pv(vTR2, sCNT, range(nq), tag, lambda qt: vS + qt*4)
    e("s_nop 7")
    for qt in range(nq):
        for k in range(4):
            e(f"v_min_u32 v{vS+qt*4+k}, -2, v{vS+qt*4+k}")
    if not wide:
        e(f"s_mov_b64 exec, s[{sSTM}:{sSTM+1}]")
    for qt in range(nq):
        d = vS + qt*4
        so = f"s{sREG}" if (qt == 0 and wide) else "s63"
        e(f"buffer_store_dwordx4 v[{d}:{d+3}], v{vOUT}, s[{sWS}:{sWS+3}], {so} offen sc1")
    if not wide:
        e("s_mov_b64 exec, -1")

def part_loads(masks=None):
    for j in range(4):
        if masks: e(f"s_mov_b64 exec, s[{masks+2*j}:{masks+2*j+1}]")
        e(f"buffer_load_dwordx2 v[{cML+2*j}:{cML+2*j+1}], v{cMA+j}, s[{sWS}:{sWS+3}], 0 offen sc1")
        e(f"buffer_load_dwordx4 v[{cO+4*j}:{cO+4*j+3}], v{cOA+j}, s[{sWS}:{sWS+3}], 0 offen sc1")
    if masks: e("s_mov_b64 exec, -1")
def poll(tag=None):
    if tag:
        e(f"s_cmp_lg_u32 s{sW}, 7")
        e(f"s_cbranch_scc1 L_nopoll_{tag}")
    e(f"buffer_load_dword v{vCV}, v{vL4}, s[{sDBG}:{sDBG+3}], 0 offen sc1")
    if tag: lab(f"L_nopoll_{tag}")
def pollchk():
    e(f"v_and_b32 v{vCV}, v{vCV}, v{vXM}")
    e(f"v_cmp_ne_u32 vcc, v{vCV}, v{vXM}")

def finisher():
    QA = vT + 24; KB = vT + 8; KA = cKA
    vKB = vPA
    if PRIO: e("s_setprio 3")
    e("s_waitcnt vmcnt(0)")
    stamp(2)
    decode_a1()
    e(f"s_mov_b32 s{sB}, s{sITEM}")
    e(f"s_mov_b32 s{sBF}, s{sITEM}")
    e(f"v_readlane_b32 s56, v{dA}, s{sITEM}")
    e(f"v_readlane_b32 s57, v{dNQ}, s{sITEM}")
    e(f"v_readlane_b32 s{sLIM}, v{dNB}, s{sITEM}")
    e(f"v_readlane_b32 s{sCTXB}, v{vCTXV}, s{sITEM}")
    e("s_nop 1")
    e(f"s_add_u32 s{sPW}, s56, s{sW}")
    e(f"s_add_u32 s58, s{sPW}, 8")
    e(f"s_sub_u32 s{sCNT}, s57, s56")
    e(f"v_readlane_b32 s{sPH0}, v{vSS}, s{sPW}")
    e(f"v_readlane_b32 s{sPH1}, v{vSS+1}, s{sPW}")
    e(f"v_readlane_b32 s{sPH2}, v{vSS}, s58")
    e(f"v_readlane_b32 s{sPH3}, v{vSS+1}, s58")
    e(f"s_lshl_b32 s{sCOL}, s{sPW}, 1")
    e(f"s_add_u32 s{sCOL}, s{sCOL}, 64")
    e(f"s_sub_u32 s{sC8}, s{sCNT}, 8")
    e(f"s_add_u32 s58, s{sCOL}, 1")
    e(f"s_cmp_lt_u32 s58, s{sLIM}")
    e(f"s_cselect_b32 s{sPH1}, s{sPH1}, s{sPH0}")
    e(f"s_add_u32 s58, s{sCOL}, 17")
    e(f"s_cmp_lt_u32 s58, s{sLIM}")
    e(f"s_cselect_b32 s{sPH3}, s{sPH3}, s{sPH2}")
    for r in (sPH0, sPH1, sPH2, sPH3): e(f"s_lshl_b32 s{r}, s{r}, 15")
    qdma(False, "F")
    e(f"s_cmp_ge_u32 s{sW}, s{sCNT}")
    e("s_cbranch_scc1 L_nok_F")
    kdma([sPH0, sPH1], 0)
    if not KBL:
        e(f"s_cmp_ge_i32 s{sW}, s{sC8}")
        e("s_cbranch_scc1 L_nok_F")
        kdma([sPH2, sPH3], LDS_B)
    lab("L_nok_F")
    decode_a2(); decode_b()
    e(f"v_cmp_lt_u32 vcc, 0, v{dNP}")
    e(f"v_sub_u32 v{dC}, v{dBt}, v{dA}")
    e(f"v_add_u32 v{dC}, 1, v{dC}")
    e(f"v_cndmask_b32 v{dNC}, 0, v{dC}, vcc")
    e(f"s_cmp_eq_u32 s{sHM}, 0xff")
    e(f"s_cselect_b32 s60, 0, s{sC0}")
    e(f"s_cmp_gt_u32 s{sB}, 3")
    e("s_cselect_b32 s60, s60, 0")
    e(f"v_readlane_b32 s61, v{dA}, s{sB}")
    e(f"v_readlane_b32 s62, v{dNC}, s{sB}")
    e(f"s_and_b32 s56, s{sHKV}, 3")
    e("s_lshl_b32 s56, s56, 3")
    e("s_lshl_b32 s56, 1, s56")
    e(f"s_lshr_b32 s57, s{sHKV}, 2")
    e("s_lshl_b32 s58, s57, 3")
    e("s_lshl_b32 s58, 0x10001, s58")
    e(f"s_cmp_eq_u32 s{sNWGH}, {N0}")
    e("s_cselect_b32 s58, 0, s58")
    e(f"v_and_b32 v{vT}, 1, v{vLANE}")
    e(f"v_cmp_eq_u32 vcc, s57, v{vT}")
    e(f"v_mov_b32 v{vT}, s56")
    e(f"v_mov_b32 v{vT+1}, s58")
    e(f"v_cndmask_b32 v{vXM}, 0, v{vT}, vcc")
    e(f"v_cmp_lt_u32 vcc, 15, v{vLANE}")
    e("s_nop 0")
    e(f"v_mov_b32 v{vFLA}, {LDS_FLAG}")
    e(f"v_cndmask_b32 v{vXM}, 0, v{vXM}, vcc")
    e(f"v_cmp_le_u32 vcc, {2*N0}, v{vLANE}")
    e("s_nop 1")
    e(f"v_cndmask_b32 v{vXM}, v{vXM}, v{vT+1}, vcc")
    e("s_add_u32 s61, s61, s60")
    e(f"s_add_u32 s62, s62, s{sNSH}")
    e(f"s_sub_u32 s61, s61, s{sNSH}")
    vq, vc, vw, vn = vT, vT+1, vT+2, vT+3
    e(f"v_lshrrev_b32 v{vq}, 2, v{vN}")
    e(f"v_and_b32 v{vc}, 3, v{vN}")
    e(f"s_and_b32 s56, s{sB}, 3")
    e(f"v_cmp_eq_u32 s[{sSTM}:{sSTM+1}], s56, v{vq}")
    e("s_lshl_b32 s56, s56, 2")
    e(f"v_add_u32 v{vc}, s56, v{vc}")
    e(f"s_lshl_b32 s56, s{sB}, 13")
    e(f"s_lshl_b32 s57, s{sHKV}, 10")
    e("s_add_u32 s56, s56, s57")
    e(f"s_lshl_b32 s57, s{sW}, 5")
    e("s_add_u32 s56, s56, s57")
    e(f"v_lshl_add_u32 v{cOUT}, v{vG}, 3, s56")
    e(f"v_lshl_add_u32 v{cOUT}, v{vN}, 8, v{cOUT}")
    e(f"s_mul_i32 s56, s{sHKV}, {HSTR}")
    e(f"s_lshl_b32 s57, s{sW}, 10")
    e("s_add_u32 s56, s56, s57")
    e(f"v_lshl_add_u32 v{vT+4}, v{vG}, 8, s56")
    e(f"v_lshl_add_u32 v{vT+4}, v{vc}, 4, v{vT+4}")
    e(f"s_lshr_b32 s57, s{sB}, 2")
    e("s_lshl_b32 s58, s57, 13")
    e(f"v_lshl_add_u32 v{vw}, v{vq}, 14, s58")
    e(f"v_add_u32 v{vw}, v{vw}, v{vT+4}")
    e(f"s_add_u32 s58, s61, {2*NSHMAX}")
    e("s_lshl_b32 s58, s58, 13")
    e(f"v_lshl_add_u32 v{vn}, v{vq}, 13, s58")
    e(f"v_add_u32 v{vn}, v{vn}, v{vT+4}")
    e(f"s_mul_i32 s56, s{sHKV}, {MLSTR}")
    e(f"s_add_u32 s56, s56, {WS_O}")
    e(f"v_lshl_add_u32 v{vT+5}, v{vc}, 3, s56")
    e(f"v_lshl_add_u32 v{vT+5}, v{vq}, 8, v{vT+5}")
    e("s_lshl_b32 s57, s57, 7")
    e(f"s_add_u32 s58, s61, {NSHMAX}")
    e("s_lshl_b32 s58, s58, 8")
    e(f"v_add_u32 v{vT+6}, s57, v{vT+5}")
    e(f"v_add_u32 v{vT+7}, s58, v{vT+5}")
    e(f"v_mov_b32 v{vT+4}, 0x7fff0000")
    for j in range(4):
        e(f"s_sub_u32 s56, s{sNSH}, {4*j}")
        e(f"s_sub_u32 s57, s62, {4*j}")
        e(f"v_cmp_gt_i32 vcc, s56, v{vq}")
        e(f"v_cmp_gt_i32 s[{sEM+2*j}:{sEM+2*j+1}], s57, v{vq}")
        e(f"v_add_u32 v{vT+12}, {j*65536}, v{vw}")
        e(f"v_add_u32 v{vT+13}, {j*32768}, v{vn}")
        e(f"v_cndmask_b32 v{cOA+j}, v{vT+13}, v{vT+12}, vcc")
        e(f"v_cndmask_b32 v{cMA+j}, v{vT+7}, v{vT+6}, vcc")
        if j: e(f"v_add_u32 v{cMA+j}, {j*1024}, v{cMA+j}")
        e(f"v_cndmask_b32 v{cOA+j}, v{vT+4}, v{cOA+j}, s[{sEM+2*j}:{sEM+2*j+1}]")
        e(f"v_cndmask_b32 v{cMA+j}, v{vT+4}, v{cMA+j}, s[{sEM+2*j}:{sEM+2*j+1}]")
    e(f"s_cmp_ge_u32 s{sW}, s{sCNT}")
    e("s_cbranch_scc1 L_idle1_F")
    e(f"s_lshl_b32 s57, s{sCOL}, 4")
    e(f"v_lshl_add_u32 v{vPOS}, v{vG}, 2, s57")
    narrow_mask()
    qk_addrs(QA, KA)
    for s in range(4): e(f"v_add_u32 v{KB+s}, {LDS_B}, v{KA+s}")
    e(f"v_sub_u32 v{vT}, v{vCTX}, v{vPOS}")
    e(f"v_subrev_u32 v{vT+1}, 256, v{vT}")
    if KBL:
        e("s_waitcnt vmcnt(8)")
        e("s_barrier")
        for s in range(4):
            r = vQ + s*4
            e(f"ds_read_b128 v[{r}:{r+3}], v{QA+s}")
        e(f"s_cmp_lt_i32 s{sW}, s{sC8}")
        e("s_cbranch_scc1 L_f1")
        if KBL == 2: e("s_barrier")
        e("s_waitcnt vmcnt(0)")
        e("s_branch L_f2")
        lab("L_f1")
        kdma([sPH2, sPH3], LDS_B)
        if KBL == 2: e("s_barrier")
        lab("L_f2")
        if PRIO: e("s_setprio 0")
    else:
        e(f"s_cmp_lt_i32 s{sW}, s{sC8}")
        e("s_cbranch_scc1 L_f1")
        e("s_waitcnt vmcnt(8)")
        lab("L_f1")
        e("s_waitcnt vmcnt(16)")
        e("s_barrier")
        for s in range(4):
            r = vQ + s*4
            e(f"ds_read_b128 v[{r}:{r+3}], v{QA+s}")
        e("s_cbranch_scc1 L_f2")
        e("s_waitcnt vmcnt(0)")
        lab("L_f2")
    e("s_waitcnt vmcnt(8)")
    stamp(3)
    kread(KA)
    e("s_waitcnt lgkmcnt(0)")
    vdma([sPH0, sPH1], 0)
    poll("a")
    qk([0], vK, lambda qt: vQ)
    e(f"s_mov_b32 s56, {f2u(SCALE):#x}")
    e("s_nop 7")
    scale_mask(0, vT)
    max8(vM, 0)
    e(f"s_cmp_ge_i32 s{sW}, s{sC8}")
    e("s_cbranch_scc1 L_maxw_F")
    e("s_waitcnt vmcnt(8)")
    if DIAG == 1: stamp(1)
    kread(KB, vKB)
    e("s_waitcnt lgkmcnt(0)")
    if not VBL: vdma([sPH2, sPH3], LDS_B)
    qk([1], vKB, lambda qt: vQ)
    e("s_nop 7")
    scale_mask(1, vT+1)
    max8(vM, 1, False)
    e("s_branch L_maxw_F")
    lab("L_idle1_F")
    e("s_waitcnt vmcnt(0)")
    e("s_barrier")
    if KBL == 2: e("s_barrier")
    if PRIO: e("s_setprio 0")
    poll("b")
    e(f"v_mov_b32 v{vM}, 0xff800000")
    lab("L_maxw_F")
    e(f"ds_write_b32 v{vMAXW}, v{vM}")
    e("s_waitcnt lgkmcnt(0)")
    if DIAG == 2: stamp(0)
    e("s_barrier")
    if DIAG == 2: stamp(1)
    if VBL == 2:
        e(f"s_cmp_ge_i32 s{sW}, s{sC8}")
        e("s_cbranch_scc1 L_novb")
        vdma([sPH2, sPH3], LDS_B)
        lab("L_novb")
    maxread(1)
    e(f"v_mov_b32 v{vL}, 0")
    e(f"s_cmp_ge_u32 s{sW}, s{sCNT}")
    e("s_cbranch_scc1 L_sumw_F")
    e(f"s_cmp_lt_i32 s{sW}, s{sC8}")
    e("s_cbranch_scc1 L_exp2_F")
    exp_p([0], lambda qt: vM)
    e("s_branch L_sumw_F")
    lab("L_exp2_F")
    exp_p([0, 1], lambda qt: vM)
    e(f"v_add_f32 v{vL}, v{vL}, v{vL+1}")
    if VBL == 1:
        e(f"ds_write_b32 v{vMAXW}, v{vL} offset:{LDS_SUM - LDS_MAX}")
        vdma([sPH2, sPH3], LDS_B)
    lab("L_sumw_F")
    e(f"ds_write_b32 v{vMAXW}, v{vL} offset:{LDS_SUM - LDS_MAX}")
    e("s_waitcnt lgkmcnt(0)")
    e("s_barrier")
    if DIAG == 2: stamp(2)
    pread(2)
    if VBL == 3:
        e(f"s_cmp_ge_i32 s{sW}, s{sC8}")
        e("s_cbranch_scc1 L_novb")
        vdma([sPH2, sPH3], LDS_B)
        lab("L_novb")
    for k in range(4): e(f"v_mov_b32 v{vS+k}, 0")
    e(f"v_mov_b32 v{cW+7}, 0xff800000")
    lsum(0)
    e(f"v_cndmask_b32 v{cMO}, v{cW+7}, v{vM}, s[{sSTM}:{sSTM+1}]")
    e(f"v_cndmask_b32 v{cLO}, 0, v{vT}, s[{sSTM}:{sSTM+1}]")
    if DIAG == 1: stamp(2)
    e(f"s_cmp_lt_i32 s{sW}, s{sC8}")
    e("s_cbranch_scc1 L_f3")
    e("s_waitcnt vmcnt(0)")
    lab("L_f3")
    e("s_waitcnt vmcnt(8)")
    stamp(4)
    e(f"s_cmp_lg_u32 s{sW}, 7")
    e("s_cbranch_scc1 L_f3b")
    pollchk()
    e(f"v_mov_b32 v{vCV}, 8")
    e("s_cbranch_vccz L_f3a")
    e(f"v_mov_b32 v{vCV}, 0")
    lab("L_f3a")
    e(f"ds_write_b32 v{vFLA}, v{vCV}")
    e("s_waitcnt lgkmcnt(0)")
    lab("L_f3b")
    e("s_barrier")
    e(f"ds_read_b32 v{vCV}, v{vFLA}")
    e("s_waitcnt lgkmcnt(0)")
    e(f"v_readfirstlane_b32 s{sGOT}, v{vCV}")
    e("s_nop 3")
    e(f"s_cmp_eq_u32 s{sGOT}, 0")
    e("s_cbranch_scc1 L_f4")
    part_loads()
    lab("L_f4")
    e(f"s_cmp_eq_u32 s{sCNT}, 0")
    e("s_cbranch_scc1 L_f6")
    pv_pre(sCNT, "Fa", None)
    pv(vTR, sCNT, [0], "Fa", lambda qt: vS)
    e(f"s_cmp_le_i32 s{sC8}, 0")
    e("s_cbranch_scc1 L_f6")
    e(f"s_cmp_lg_u32 s{sGOT}, 0")
    e("s_cbranch_scc1 L_f5")
    e("s_waitcnt vmcnt(0)")
    lab("L_f5")
    pv_pre(sC8, "Fb", ["s_waitcnt vmcnt(8)", lambda: stamp(5)])
    pv(vTR2, sC8, [1], "Fb", lambda qt: vS)
    lab("L_f6")
    e(f"s_mov_b32 s{sKK}, 0")
    e(f"s_cmp_lg_u32 s{sGOT}, 0")
    e("s_cbranch_scc1 L_chk")
    lab("L_pl")
    poll()
    e("s_waitcnt vmcnt(0)")
    pollchk()
    e(f"s_add_u32 s{sKK}, s{sKK}, 1")
    e("s_cbranch_vccz L_pl2")
    e(f"s_cmp_lt_u32 s{sKK}, {LIMIT}")
    e("s_cbranch_scc1 L_pl")
    lab("L_pl2")
    part_loads()
    lab("L_chk")
    e("s_waitcnt vmcnt(0)")
    T = cW
    for j in range(4):
        e(f"v_max3_u32 v{T+j}, v{cO+4*j}, v{cO+4*j+1}, v{cO+4*j+2}")
        e(f"v_max3_u32 v{T+j}, v{T+j}, v{cO+4*j+3}, v{cML+2*j}")
        e(f"v_max_u32 v{T+j}, v{T+j}, v{cML+2*j+1}")
    e(f"v_max3_u32 v{T+4}, v{T}, v{T+1}, v{T+2}")
    e(f"v_max_u32 v{T+4}, v{T+4}, v{T+3}")
    e(f"v_cmp_eq_u32 vcc, -1, v{T+4}")
    e(f"s_add_u32 s{sKK}, s{sKK}, 1")
    e("s_cbranch_vccz L_comb")
    e(f"s_cmp_ge_u32 s{sKK}, {LIMIT}")
    e("s_cbranch_scc1 L_comb")
    for j in range(4):
        e(f"v_cmp_eq_u32 s[{56+2*j}:{57+2*j}], -1, v{T+j}")
    e("s_nop 3")
    part_loads(56)
    e("s_branch L_chk")
    lab("L_comb")
    stamp(6)
    M, Ls, R = vT, vT+1, vT+2
    W = cW
    for j in range(1, 4):
        e(f"v_cndmask_b32 v{cML+2*j}, v{cW+7}, v{cML+2*j}, s[{sEM+2*j}:{sEM+2*j+1}]")
    e(f"v_max3_f32 v{M}, v{cML}, v{cML+2}, v{cML+4}")
    e(f"v_max3_f32 v{M}, v{M}, v{cML+6}, v{cMO}")
    for k in range(4):
        e(f"v_cndmask_b32 v{vS+k}, 0, v{vS+k}, s[{sSTM}:{sSTM+1}]")
        if k & 1:
            e(f"v_max_f32_dpp v{M}, v{M}, v{M} row_ror:{4 if k == 1 else 8} row_mask:0xf bank_mask:0xf")
    for j in range(4): e(f"v_sub_f32 v{W+j}, v{cML+2*j}, v{M}")
    e(f"v_sub_f32 v{W+4}, v{cMO}, v{M}")
    for j in range(5): e(f"v_exp_f32 v{W+j}, v{W+j}")
    e("s_nop 0")
    e(f"v_mul_f32 v{Ls}, v{W+4}, v{cLO}")
    for j in range(4): e(f"v_fmac_f32 v{Ls}, v{W+j}, v{cML+2*j+1}")
    for k in range(4): e(f"v_mul_f32 v{vS+k}, v{W+4}, v{vS+k}")
    e(f"v_add_f32_dpp v{Ls}, v{Ls}, v{Ls} row_ror:4 row_mask:0xf bank_mask:0xf")
    for j in range(4):
        for k in range(4): e(f"v_fmac_f32 v{vS+k}, v{W+j}, v{cO+4*j+k}")
        if j == 0: e(f"v_add_f32_dpp v{Ls}, v{Ls}, v{Ls} row_ror:8 row_mask:0xf bank_mask:0xf")
        if j == 1: e(f"v_rcp_f32 v{R}, v{Ls}")
        if j == 2:
            e(f"v_fma_f32 v{R+1}, -v{Ls}, v{R}, 1.0")
            e(f"v_fmac_f32 v{R}, v{R+1}, v{R}")
    for ror in (4, 8):
        for k in range(4):
            e(f"v_add_f32_dpp v{vS+k}, v{vS+k}, v{vS+k} row_ror:{ror} row_mask:0xf bank_mask:0xf")
    for k in range(4): e(f"v_mul_f32 v{vS+k}, v{vS+k}, v{R}")
    e(f"v_cvt_pk_bf16_f32 v{vS+4}, v{vS}, v{vS+1}")
    e(f"v_cvt_pk_bf16_f32 v{vS+5}, v{vS+2}, v{vS+3}")
    e("s_mov_b32 exec_lo, 0x000f000f")
    e("s_mov_b32 exec_hi, 0x000f000f")
    e(f"buffer_store_dwordx2 v[{vS+4}:{vS+5}], v{cOUT}, s[{sOUT}:{sOUT+3}], 0 offen")
    e("s_mov_b64 exec, -1")

assert N0 - 8 - NSHF + N0 - 8 >= 26 and N1 - 8 - NSHS <= NNAR and N0 - 8 - NSHF <= NNAR
hdr = ["; paged KV radix attention decode, generated by gen17.py", f"; soff={WS_O + WS_ML}",
       f"; @launch grid=({NWG},1,1) block=(512,1,1) lds={LDS_TOTAL}"]
L.append('.amdgcn_target "amdgcn-amd-amdhsa--gfx950"')
L.append(".text")
L.append(f".globl {NAME}_kernel")
L.append(".p2align 8")
L.append(f".type {NAME}_kernel,@function")
lab(f"{NAME}_kernel")
stamp(0)
e("s_load_dwordx16 s[4:19], s[0:1], 0")
e(f"s_cmp_ge_u32 s2, {NWG}")
e("s_cbranch_scc1 L_exit")
if CPF == 1:
    e("s_getpc_b64 s[58:59]")
    lab("L_pc0")
    e(f"v_lshlrev_b32 v{vT}, {CPS}, v0")
    e(f"v_min_u32 v{vT}, L_exit-L_pc0, v{vT}")
    e(f"global_load_dword v{vVA+31}, v{vT}, s[58:59]")
e(f"v_and_b32 v{vLANE}, 63, v0")
e(f"v_lshrrev_b32 v{vG}, 6, v0")
e(f"v_lshlrev_b32 v{vL4}, 2, v{vLANE}")
e(f"v_readfirstlane_b32 s{sW}, v{vG}")
if WARM:
    e("s_cmp_lt_u32 s2, 64")
    e("s_cbranch_scc1 L_bk")
    e("s_nop 1")
    e(f"s_cmp_eq_u32 s{sW}, 3")
    e("s_cbranch_scc1 L_st1")
    e(f"s_cmp_eq_u32 s{sW}, 2")
    e("s_cbranch_scc1 L_st2")
lab("L_bk")
e(f"v_and_b32 v{vSSO}, 31, v{vLANE}")
e(f"v_lshlrev_b32 v{vSSO}, 3, v{vSSO}")
e(f"v_lshrrev_b32 v{vBTO}, 5, v{vLANE}")
e(f"v_lshl_add_u32 v{vBTO}, v{vBTO}, 9, v{vSSO}")
e(f"v_lshrrev_b32 v{vG}, 4, v{vLANE}")
e(f"v_and_b32 v{vN}, 15, v{vLANE}")
e(f"s_and_b32 s{sHKV}, s2, 7")
e(f"s_lshr_b32 s{sITEM}, s2, 3")
e(f"s_sub_u32 s57, s2, {8*N0}")
e("s_lshr_b32 s58, s57, 1")
e(f"s_add_u32 s58, s58, {N0}")
e("s_and_b32 s57, s57, 1")
e("s_lshl_b32 s57, s57, 2")
e(f"s_mov_b32 s{sBT+2}, {8*128*4}")
e(f"s_mov_b32 s{sBT+3}, 0x00020000")
e(f"s_mov_b32 s{sCT+2}, 32")
e(f"s_mov_b32 s{sCT+3}, 0x00020000")
e(f"s_lshl_b32 s60, s{sITEM}, 9")
e("s_add_u32 s60, s60, 256")
e(f"s_cmp_lt_u32 s{sITEM}, 8")
e("s_cselect_b32 s60, s60, 0")
e("s_waitcnt lgkmcnt(0)")
stamp(1)
e(f"s_mov_b32 s{sCT}, s12")
e(f"s_and_b32 s{sCT+1}, s13, 0xffff")
e(f"s_mov_b32 s{sBT}, s10")
e(f"s_and_b32 s{sBT+1}, s11, 0xffff")
e(f"buffer_load_dword v{vCTXV}, v{vL4}, s[{sCT}:{sCT+3}], 0 offen")
e(f"buffer_load_dwordx2 v[{vSS}:{vSS+1}], v{vSSO}, s[{sBT}:{sBT+3}], s60 offen")
e("s_lshr_b32 s56, s6, 8")
e(f"s_sub_u32 s59, {SLOWC}, s56")
e("s_and_b32 s59, s59, 3")
e("s_add_u32 s59, s59, s57")
e(f"s_cmp_ge_u32 s2, {8*N0}")
e(f"s_cselect_b32 s{sHKV}, s59, s{sHKV}")
e(f"s_cselect_b32 s{sITEM}, s58, s{sITEM}")
e(f"s_add_u32 s56, s56, s{sHKV}")
e("s_and_b32 s56, s56, 3")
e(f"s_cmp_eq_u32 s56, {SLOWC}")
e(f"s_cselect_b32 s{sNSH}, {NSHS}, {NSHF}")
e(f"s_cselect_b32 s{sWB}, {32//NSHS}, {32//NSHF}")
e(f"s_cselect_b32 s{sWR}, {32%NSHS}, {32%NSHF}")
e(f"s_cselect_b32 s{sNWGH}, {N1}, {N0}")
e(f"s_cselect_b32 s61, {FS}, {FF}")
e(f"s_add_u32 s62, s{sNSH}, 8")
def issue_bt(nfw):
    e(f"s_cmp_lt_u32 s{sITEM}, s{nfw}")
    e("s_cselect_b32 s56, 0, 256")
    for j in range(4):
        e(f"buffer_load_dwordx2 v[{vR+2*j}:{vR+2*j+1}], v{vBTO}, s[{sBT}:{sBT+3}], s56 offen offset:{j*1024}")
e(f"s_cmp_lt_u32 s{sITEM}, 8")
e("s_cbranch_scc1 L_nobt")
issue_bt(62)
lab("L_nobt")
if L2W:
    e(f"s_cmp_lt_u32 s{sW}, {HW0}")
    e("s_cbranch_scc1 L_nohop")
    e("s_lshr_b32 s56, s2, 3")
    e(f"s_mul_i32 s56, s56, {8-HW0}")
    e(f"s_add_u32 s56, s56, s{sW}")
    e("s_cmp_ge_u32 s56, @NHOP@")
    e("s_cbranch_scc1 L_nohop")
    e(f"s_mul_i32 s56, s56, {LSTR}")
    e("s_getpc_b64 s[58:59]")
    lab("L_pc")
    e(f"s_add_u32 s56, s56, @FIRSTB@-(L_pc-{NAME}_kernel)")
    e("s_add_u32 s58, s58, s56")
    e("s_addc_u32 s59, s59, 0")
    e("s_mov_b64 exec, 0")
    e("s_setpc_b64 s[58:59]")
    lab("L_ret")
    e("s_mov_b64 exec, -1")
    lab("L_nohop")
e(f"s_sub_u32 s{sNPRIV}, s{sNWGH}, s62")
srd(sK, 6, KV_BYTES)
srd(sV, 8, KV_BYTES)
srd(sQ, 4, 8*32*128*2)
srd(sOUT, 14, 8*32*128*2)
srd(sDBG, 16, 256)
srd(sWS, 18, WS_O + WS_ML + 65536)
e(f"s_mov_b32 s{sF}, s61")
e(f"s_mov_b32 s{sNFW}, s62")
def region():
    e(f"s_sub_u32 s56, s{sITEM}, s{sNFW}")
    e(f"s_add_u32 s57, s56, {2*NSHMAX}")
    e(f"s_add_u32 s56, s56, {NSHMAX}")
    e(f"s_sub_u32 s59, s{sITEM}, 8")
    e(f"s_lshl_b32 s58, s59, 1")
    e(f"s_cmp_lt_u32 s{sITEM}, s{sNFW}")
    e(f"s_cselect_b32 s57, s58, s57")
    e(f"s_cselect_b32 s56, s59, s56")
    e("s_lshl_b32 s57, s57, 13")
    e("s_lshl_b32 s56, s56, 8")
    e(f"s_mul_i32 s58, s{sHKV}, {HSTR}")
    e(f"s_add_u32 s{sREG}, s57, s58")
    e(f"s_mul_i32 s58, s{sHKV}, {MLSTR}")
    e(f"s_add_u32 s56, s56, s58")
    e(f"s_add_u32 s{sMLB}, s56, {WS_O}")
region()
e(f"s_lshl_b32 s57, s{sW}, 10")
e(f"v_lshl_add_u32 v{vOUT}, v{vLANE}, 4, s57")
for k in range(4): e(f"v_mov_b32 v{vPA+k}, -1")
e(f"s_lshl_b32 s57, s{sW}, 5")
e(f"s_add_u32 s57, s57, s{sMLB}")
e(f"s_add_u32 s58, s{sREG}, 8192")
e(f"s_cmp_lt_u32 s{sITEM}, 8")
e("s_cbranch_scc1 L_init1")
e("s_mov_b64 exec, 15")
e(f"buffer_store_dwordx2 v[{vPA}:{vPA+1}], v{vSSO}, s[{sWS}:{sWS+3}], s57 offen sc1")
e("s_mov_b64 exec, -1")
e(f"buffer_store_dwordx4 v[{vPA}:{vPA+3}], v{vOUT}, s[{sWS}:{sWS+3}], s{sREG} offen sc1")
e(f"s_cmp_ge_u32 s{sITEM}, s{sNFW}")
e("s_cbranch_scc1 L_init1")
e(f"buffer_store_dwordx4 v[{vPA}:{vPA+3}], v{vOUT}, s[{sWS}:{sWS+3}], s58 offen sc1")
lab("L_init1")
e(f"s_mov_b32 s{sSIG}, s{sW}")
e(f"s_mov_b32 s{sI0}, s{sITEM}")
e(f"s_mov_b64 s[{sM8}:{sM8+1}], 0xff")
e(f"s_lshl_b32 s56, s{sHKV}, 8")
for j in range(4):
    e(f"v_add_u32 v{vT}, {4*j}, v{vG}")
    e(f"v_xor_b32 v{vT+1}, v{vT}, v{vN}")
    e(f"v_lshlrev_b32 v{vT+1}, 4, v{vT+1}")
    e(f"v_lshl_add_u32 v{vT+1}, v{vT}, 11, v{vT+1}")
    e(f"v_add_u32 v{vKO[j]}, s56, v{vT+1}")
for odd in range(2):
    vo = vVOFF1 if odd else vVOFF0
    e(f"v_add_u32 v{vT}, {4*odd}, v{vG}")
    e(f"v_lshrrev_b32 v{vT+1}, 1, v{vN}")
    e(f"v_xor_b32 v{vT+1}, v{vT+1}, v{vT}")
    e(f"v_lshlrev_b32 v{vT+1}, 1, v{vT+1}")
    e(f"v_and_b32 v{vT+2}, 1, v{vN}")
    e(f"v_or_b32 v{vT+1}, v{vT+1}, v{vT+2}")
    e(f"v_lshlrev_b32 v{vT+1}, 4, v{vT+1}")
    e(f"v_lshl_add_u32 v{vo}, v{vT}, 11, v{vT+1}")
    e(f"v_add_u32 v{vo}, s56, v{vo}")
e(f"v_mul_u32_u24 v{vMAXR}, {XS}, v{vN}")
e(f"v_add_u32 v{vMAXR}, {LDS_MAX}, v{vMAXR}")
e(f"s_lshl_b32 s57, s{sW}, 4")
e(f"v_lshl_add_u32 v{vMAXW}, v{vG}, 2, s57")
e(f"v_add_u32 v{vMAXW}, v{vMAXW}, v{vMAXR}")
e(f"s_lshl_b32 s57, s{sW}, 11")
e(f"s_add_u32 s57, s57, {LDS_P}")
e(f"v_lshl_add_u32 v{vPW}, v{vLANE}, 4, s57")
e(f"v_lshrrev_b32 v{vT}, 2, v{vN}")
e(f"v_lshl_add_u32 v{vT}, v{vG}, 2, v{vT}")
e(f"v_and_b32 v{vT+1}, 7, v{vT}")
e(f"v_and_b32 v{vT+2}, 3, v{vN}")
e(f"v_lshlrev_b32 v{vT+2}, 3, v{vT+2}")
e(f"v_lshl_add_u32 v{vT+2}, v{vT}, 8, v{vT+2}")
e(f"v_xor_b32 v{vT+3}, s{sW}, v{vT+1}")
e(f"v_lshl_add_u32 v{vTR}, v{vT+3}, 5, v{vT+2}")
e(f"v_add_u32 v{vTR2}, {LDS_B}, v{vTR}")
e(f"s_lshl_b32 s57, s{sHKV}, 10")
e(f"v_lshl_add_u32 v{vQS}, v{vG}, 8, s57")
e(f"v_mov_b32 v{vMAG}, 0x8000")
for i, m in enumerate((65536, 52429, 43691, 37450)):
    e(f"s_mov_b32 s56, {m}")
    e(f"v_writelane_b32 v{vMAG}, s56, {i}")
e(f"s_cmp_ge_u32 s{sITEM}, 8")
e("s_cbranch_scc1 L_item2")
finisher()
e("s_branch L_fin")
lab("L_item")
issue_bt(sNFW)
region()
e("s_waitcnt vmcnt(0)")
e("s_branch L_item2")
lab("L_st1")
e("s_branch L_bk")
lab("L_item2")
e(f"s_sub_u32 s58, s{sITEM}, 8")
e(f"s_cmp_lt_u32 s58, s{sWR}")
e(f"s_addc_u32 s{sCNT}, s{sWB}, 0")
e(f"s_min_u32 s56, s58, s{sWR}")
e(f"s_mul_i32 s57, s58, s{sWB}")
e(f"s_add_u32 s{sP0}, s56, s57")
e(f"v_lshrrev_b32 v{vT}, 3, v{vSSO}")
e(f"v_subrev_u32 v{vT}, s{sP0}, v{vT}")
e(f"v_cmp_gt_u32 s[{sCHK}:{sCHK+1}], s{sCNT}, v{vT}")
e(f"s_add_u32 s{sPW}, s{sP0}, s{sW}")
e(f"s_lshl_b32 s{sCOL}, s{sPW}, 1")
e(f"s_sub_u32 s{sKK}, s{sITEM}, s{sNFW}")
e(f"s_cmp_ge_u32 s{sITEM}, s{sNFW}")
e("s_cbranch_scc1 L_ptype")
e("s_waitcnt vmcnt(3)")
stamp(2)
e(f"v_readlane_b32 s{sPH0}, v{vSS}, s{sPW}")
e(f"v_readlane_b32 s{sPH1}, v{vSS+1}, s{sPW}")
e(f"v_cmp_ne_u32 vcc, v{vR}, v{vSS}")
for j in range(4):
    for h in range(2):
        if j == 0 and h == 0: continue
        e(f"v_cmp_ne_u32 s[62:63], v{vR+2*j+h}, v{vSS+h}")
        e("s_or_b64 vcc, vcc, s[62:63]")
e(f"s_and_b64 vcc, vcc, s[{sCHK}:{sCHK+1}]")
e(f"s_lshl_b32 s{sPH0}, s{sPH0}, 15")
e(f"s_lshl_b32 s{sPH1}, s{sPH1}, 15")
e("s_cbranch_vccnz L_fallback")
body(True)
e("s_branch L_tail")
lab("L_fallback")
decode_a1(); decode_a2()
e(f"s_mov_b32 s{sB}, 0")
e(f"s_mov_b32 s{sLIM}, 128")
lab("L_fbloop")
e(f"s_mov_b32 s{sBF}, s{sB}")
e("s_branch L_narrow")
lab("L_st2")
e("s_branch L_bk")
lab("L_ptype")
e("s_waitcnt vmcnt(2)")
stamp(2)
decode_a1(); decode_a2()
e(f"s_cmp_ge_u32 s{sITEM}, s{sNIT}")
e("s_cbranch_scc1 L_inact")
e(f"s_cmp_ge_u32 s{sKK}, s{sC0}")
e(f"s_cselect_b32 s56, s{sC0}, 0")
e(f"s_cselect_b32 s57, s{sG1}, s{sG0}")
e(f"s_cselect_b32 s{sHM}, 0xf0, s{sHM}")
e(f"s_sub_u32 s{sKK}, s{sKK}, s56")
e(f"s_mul_i32 s56, s{sKK}, s{sSZ}")
e(f"s_add_u32 s59, s56, s{sW}")
e(f"v_cmp_lt_u32 vcc, s59, v{dEN}")
e(f"v_cmp_lt_u32 s[60:61], s56, v{dEN}")
e("s_sub_u32 s57, s57, s56")
e(f"s_min_u32 s{sCNT}, s57, s{sSZ}")
e(f"s_and_b32 s58, s{sHM}, vcc_lo")
e(f"s_ff1_i32_b32 s{sB}, s58")
e(f"s_and_b32 s{sB}, s{sB}, 7")
e(f"s_and_b32 s60, s{sHM}, s60")
e(f"s_ff1_i32_b32 s{sBF}, s60")
e(f"v_readlane_b32 s57, v{dE}, s{sB}")
e(f"v_readlane_b32 s{sLIM}, v{dNB}, s{sB}")
e("s_nop 3")
e(f"s_sub_u32 s{sPW}, s59, s57")
e(f"s_lshl_b32 s{sCOL}, s{sPW}, 1")
e(f"s_add_u32 s{sCOL}, s{sCOL}, 64")
lab("L_narrow")
e(f"s_and_b32 s56, s{sB}, 1")
e("s_lshl_b32 s56, s56, 5")
e(f"s_add_u32 s56, s56, s{sPW}")
e("s_and_b32 s56, s56, 63")
e(f"v_readlane_b32 s{sPH0}, v{vR}, s56")
e(f"v_readlane_b32 s{sPH1}, v{vR+1}, s56")
for j in range(1, 4):
    e(f"v_readlane_b32 s{58+2*j}, v{vR+2*j}, s56")
    e(f"v_readlane_b32 s{59+2*j}, v{vR+2*j+1}, s56")
e(f"v_readlane_b32 s{sCTXB}, v{vCTXV}, s{sB}")
e(f"s_lshr_b32 s57, s{sB}, 1")
e(f"s_add_u32 s58, s{sCOL}, 1")
e("s_nop 2")
for j in range(1, 4):
    e(f"s_cmp_eq_u32 s57, {j}")
    e(f"s_cselect_b32 s{sPH0}, s{58+2*j}, s{sPH0}")
    e(f"s_cselect_b32 s{sPH1}, s{59+2*j}, s{sPH1}")
e(f"s_cmp_lt_u32 s58, s{sLIM}")
e(f"s_cselect_b32 s{sPH1}, s{sPH1}, s{sPH0}")
e(f"s_lshl_b32 s{sPH0}, s{sPH0}, 15")
e(f"s_lshl_b32 s{sPH1}, s{sPH1}, 15")
body(False)
e(f"s_cmp_ge_u32 s{sITEM}, s{sNFW}")
e("s_cbranch_scc1 L_tail")
e(f"s_add_u32 s{sB}, s{sB}, 1")
e(f"s_cmp_ge_u32 s{sB}, 8")
e("s_cbranch_scc1 L_tail")
e("s_waitcnt vmcnt(0) lgkmcnt(0)")
e("s_barrier")
e("s_branch L_fbloop")
lab("L_tail")
stamp(5)
e(f"s_add_u32 s{sITEM}, s{sITEM}, s{sNWGH}")
e(f"s_sub_u32 s{sITEM}, s{sITEM}, 8")
e(f"s_cmp_ge_u32 s{sITEM}, s{sNIT}")
e("s_cbranch_scc1 L_fin")
e("s_waitcnt vmcnt(0) lgkmcnt(0)")
e("s_barrier")
e("s_branch L_item")
lab("L_inact")
signal("x")
lab("L_fin")
stamp(7)
stamp_flush(8)
lab("L_exit")
e("s_endpgm")
L.append('.section .rodata,"a"')
L.append(".p2align 6")
L.append(f".amdhsa_kernel {NAME}_kernel")
L.append(f"  .amdhsa_next_free_vgpr {NVGPR}")
L.append("  .amdhsa_next_free_sgpr 102")
L.append(f"  .amdhsa_accum_offset {NVGPR}")
L.append("  .amdhsa_group_segment_fixed_size 0")
L.append("  .amdhsa_kernarg_size 64")
L.append("  .amdhsa_user_sgpr_count 2")
L.append("  .amdhsa_user_sgpr_kernarg_segment_ptr 1")
L.append("  .amdhsa_system_sgpr_workgroup_id_x 1")
L.append(".end_amdhsa_kernel")
assert OUTP
def sizes(lines):
    import subprocess, re
    open("p1.s", "w").write("\n".join(lines) + "\n")
    subprocess.check_call(["clang", "-x", "assembler", "-target", "amdgcn-amd-amdhsa", "-mcpu=gfx950", "-c", "p1.s", "-o", "p1.o"])
    d = subprocess.check_output(["llvm-objdump", "-d", "p1.o"]).decode()
    r = []
    for ln in d.splitlines():
        m = re.search(r"// ([0-9A-F]{12}): ((?:[0-9A-F]{8} ?)+)", ln)
        if m: r.append(4*len(m.group(2).split()))
    return r
if L2W:
    P1 = [x.replace("@NHOP@", "1000").replace("@FIRSTB@", "4096") for x in L]
    sz = sizes(P1)
    isins = [x.startswith("    ") for x in L]
    assert sum(isins) == len(sz), (sum(isins), len(sz))
    atoms = []; k = 0; cur = None
    for x, ii in zip(L, isins):
        n = 0
        if ii: n = sz[k]; k += 1
        t = x.strip()
        wr = ii and (t.startswith("s_mov_b64 exec,") or " exec_lo," in t or " exec_hi," in t)
        if cur is not None:
            cur[0].append(x); cur[1] += n
            if t == "s_mov_b64 exec, -1": atoms.append(cur); cur = None
        elif wr and t != "s_mov_b64 exec, -1":
            cur = [[x], n]
        else:
            atoms.append([[x], n])
    assert cur is None
    N = []; off = 0; first = None; npad = 0; seen_ret = False
    for lines, n in atoms:
        if n and seen_ret:
            assert n <= LSTR - 4
            if off % LSTR and (off % LSTR) + n > LSTR:
                while off % LSTR: N.append("    s_nop 0"); off += 4; npad += 1
            if off % LSTR == 0:
                N.append("    s_cbranch_execz L_ret");
                if first is None: first = off
                last = off
                off += 4
        N += lines; off += n
        if "L_init1:" in lines: seen_ret = True
    nl = (last - first)//LSTR + 1
    print("code bytes", off, "lines", nl, "first", first, "pad", npad)
    assert nl + HW0 > 64
    L = [x.replace("@NHOP@", str(nl + HW0)).replace("@FIRSTB@", str(first - HW0*LSTR + 65536) + "-65536") for x in N]
out = "\n".join(hdr + L) + "\n"
open(OUTP, "w").write(out)
print("ok", len(L), "lds", LDS_TOTAL, "soff", WS_O + WS_ML)
```

```python
import sys,re,os
SP=os.environ.get('SPEC','FWN')
src=open(sys.argv[1]).read()
def rep(a,b,cnt=1):
    global src
    assert src.count(a)==cnt,(a,src.count(a))
    src=src.replace(a,b)
def J(s): return ''.join('    '+l.strip()+'\n' if not l.strip().endswith(':') else l.strip()+'\n' for l in s.strip().split('\n'))
ctx=[1536+(((b+1)*79)&511) for b in range(8)]
nblk=[(c+15)//16 for c in ctx]; npair=[max(n-63,0)//2 for n in nblk]
def bt(b,c): return c if c<64 else 64+b*64+(c-64)
def ent(cls,item,w):
    nsh,s0,s1,n,f=[int(re.search(r's_cselect_b32 %s, (\d+), (\d+)\n'%r,src).group(2-cls)) for r in ('s91','s0','s1','s97','s61')]
    def enc(b,col,act,q):
        if not act or ('F' if item<8 else 'W' if item<8+nsh else 'N') not in SP: return q<<13
        inc=1 if col+1<(nblk[b] if col>=64 else 128) else 0
        assert bt(b,col+1)==bt(b,col)+1
        return bt(b,col)|(inc<<10)|(1<<11)|(q<<13)
    qn=lambda w,b: min(((w-b)&3)+b,7)
    if item>=n: return 0
    if item<8:
        b=item; st=max(npair[b]-f,0)
        return enc(b,64+2*(st+w),w<npair[b]-st,qn(w,b))
    if item<8+nsh:
        i=item-8; cnt=s0+(i<s1); st=min(i,s1)+i*s0
        return enc(0,2*(st+w),w<cnt,w)
    rem=[max(p-f,0) for p in npair]; assert min(rem[1:7])>=3
    T=sum(rem); slots=n-8-nsh
    pw=next((p for p in (4,5,6,7) if -(-T//p)<=slots),8)
    k=item-8-nsh
    if k*pw>=T: return 0
    cum=[sum(rem[:b+1]) for b in range(8)]
    fb=lambda x: next(b for b in range(8) if x<cum[b])
    b0=fb(k*pw); x=k*pw+w
    if w>=min(T-k*pw,pw): return qn(w,b0)<<13
    b=fb(x); return enc(b,64+2*(x-(cum[b]-rem[b])),True,qn(w,b0))
tab=''.join('    .long 0x%08x\n'%(ent(0,i,w)|(ent(1,i,w)<<16)) for i in range(35) for w in range(8))
rep('L_exit:\n    s_endpgm\n','L_exit:\n    s_endpgm\n.p2align 6\nL_tab:\n'+tab)
consts=['s_mov_b32 s26, 18874368','s_mov_b32 s27, 0x00020000','s_mov_b32 s30, 18874368','s_mov_b32 s31, 0x00020000','s_mov_b32 s22, 65536','s_mov_b32 s23, 0x00020000','s_mov_b32 s38, 65536','s_mov_b32 s39, 0x00020000','s_mov_b32 s42, 256','s_mov_b32 s43, 0x00020000',re.search(r's_mov_b32 s46, \d+',src).group(0),'s_mov_b32 s47, 0x00020000']
for c in consts: rep('    '+c+'\n','')
rep('L_pc0:\n','L_pc0:\n'+J('''s_lshr_b32 s74, s2, 3
s_sub_u32 s75, s2, 186
s_lshr_b32 s75, s75, 1
s_cmp_ge_u32 s2, 248
s_cselect_b32 s74, s75, s74
s_lshl_b32 s74, s74, 5
s_add_u32 s74, s74, L_tab-L_pc0
v_lshrrev_b32 v2, 6, v0
v_lshl_add_u32 v113, v2, 2, s74
global_load_dword v238, v113, s[58:59]'''))
rep('    v_and_b32 v1, 63, v0\n    v_lshrrev_b32 v2, 6, v0\n','    v_and_b32 v1, 63, v0\n')
ko=''
for r,o in ((4,0),(7,4),(12,8),(0,12)):
    old=J(f'''v_add_u32 v112, {o}, v2
v_xor_b32 v113, v112, v3
v_lshlrev_b32 v113, 4, v113
v_lshl_add_u32 v113, v112, 11, v113
v_add_u32 v{r}, s56, v113''')
    rep(old,f'    v_add_u32 v{r}, s56, v{r}\n')
    ko+=J(f'''v_add_u32 v112, {o}, v2
v_xor_b32 v113, v112, v3
v_lshlrev_b32 v113, 4, v113
v_lshl_add_u32 v{r}, v112, 11, v113''')
pre=J('\n'.join(consts))+ko+J('''s_and_b32 s74, s51, 3
s_lshl_b32 s74, s74, 2
v_add_u32 v142, s74, v2
v_xor_b32 v142, v142, v3
v_lshlrev_b32 v142, 4, v142
v_lshl_add_u32 v142, v2, 8, v142
s_lshl_b32 s75, s51, 10
v_lshl_add_u32 v13, v1, 4, s75
v_mov_b32 v144, -1
v_mov_b32 v145, -1
v_mov_b32 v146, -1
v_mov_b32 v147, -1''')
rep(J('''s_lshl_b32 s57, s51, 10
v_lshl_add_u32 v13, v1, 4, s57
v_mov_b32 v144, -1
v_mov_b32 v145, -1
v_mov_b32 v146, -1
v_mov_b32 v147, -1'''),'')
rep('    s_cselect_b32 s60, s60, 0\n    s_waitcnt lgkmcnt(0)\n','    s_cselect_b32 s60, s60, 0\n'+pre+'    s_waitcnt lgkmcnt(0)\n')
rep('    s_add_u32 s62, s91, 8\n','    s_cselect_b32 s77, 16, 0\n    s_add_u32 s62, s91, 8\n')
kl=''
for i,(r,s) in enumerate([(4,78),(7,78),(12,78),(0,78),(4,79),(7,79),(12,79),(0,79)]):
    kl+=f's_add_u32 m0, s60, {i*1024}\ns_nop 0\nbuffer_load_dwordx4 v{r}, s[24:27], s{s} offen nt lds\n'
rep('    v_writelane_b32 v255, s56, 3\n',J('''v_writelane_b32 v255, s56, 3
s_waitcnt vmcnt(10)
s_cmp_lt_u32 s49, 8
s_cbranch_scc0 L_i_x
s_waitcnt vmcnt(3)
L_i_x:
s_cmp_lt_u32 s49, s16
s_cbranch_scc1 L_i_y
s_waitcnt vmcnt(9)
L_i_y:
v_readfirstlane_b32 s81, v238
s_lshl_b32 s74, s48, 10
s_add_u32 m0, s75, 131072
s_lshl_b32 s60, s51, 13
s_mov_b32 s54, 2
s_lshr_b32 s81, s81, s77
s_and_b32 s80, s81, 0xe000
s_add_u32 s74, s74, s80
s_and_b32 s78, s81, 0x3ff
buffer_load_dwordx4 v142, s[20:23], s74 offen lds
s_bfe_u32 s79, s81, 0x1000a
s_add_u32 s79, s79, s78
s_lshl_b32 s78, s78, 15
s_lshl_b32 s79, s79, 15
s_bitcmp1_b32 s81, 11
s_cbranch_scc0 L_nospec
s_mov_b32 s54, 1
'''+kl+'''s_branch L_spdone
L_nospec:
s_mov_b64 s[78:79], -1
L_spdone:'''))
def wt(n,X): return J(f'''s_waitcnt vmcnt({n+9})
s_cmp_eq_u32 s54, 1
s_cbranch_scc1 L_sw_{X}
s_waitcnt vmcnt({n+1})
L_sw_{X}:''')
rep('    s_cbranch_scc1 L_item2\n    s_waitcnt vmcnt(0)\n','    s_cbranch_scc1 L_item2\n'+wt(0,'F'))
rep('    s_cbranch_scc1 L_ptype\n    s_waitcnt vmcnt(3)\n','    s_cbranch_scc1 L_ptype\n'+wt(3,'W'))
rep('L_ptype:\n    s_waitcnt vmcnt(2)\n','L_ptype:\n'+wt(2,'N'))
def site(X):
    q=J('s_lshl_b32 s56, s51, 13') if X=='W' else J('''s_sub_u32 s56, s51, s3
s_and_b32 s56, s56, 3
s_add_u32 s56, s56, s3
s_min_u32 s56, s56, 7
s_lshl_b32 s56, s56, 13
s_cmp_ge_u32 s51, 4
s_cselect_b32 s56, s80, s56''')
    return J(f'''s_cmp_eq_u32 s54, 0
s_cbranch_scc1 L_norm_{X}
s_mov_b32 s54, 0''')+q+J(f'''s_cmp_lg_u32 s56, s80
s_cbranch_scc1 L_mis_{X}
s_cmp_ge_u32 s51, s52
s_cbranch_scc1 L_nok_{X}
s_cmp_eq_u64 s[82:83], s[78:79]
s_cbranch_scc1 L_nok_{X}
s_cmp_eq_u32 s78, -1
s_cbranch_scc1 L_noq_{X}
L_mis_{X}:
s_waitcnt vmcnt(0)
L_norm_{X}:''')
for X in 'FN':
    a=f'    s_cmp_ge_u32 s51, 4\n    s_cbranch_scc1 L_noq_{X}\n'
    rep(a,site(X)+a)
rep('    s_cmp_ge_u32 s51, s52\n    s_cbranch_scc1 L_nok_W\n','L_noq_W:\n    s_cmp_ge_u32 s51, s52\n    s_cbranch_scc1 L_nok_W\n')
rep('    s_cbranch_vccnz L_fallback\n','    s_cbranch_vccnz L_fallback\n'+site('W'))
rep('L_fallback:\n','L_fallback:\n    s_mov_b64 s[78:79], -1\n    s_mov_b32 s80, -1\n')
rep('L_inact:\n','L_inact:\n    s_waitcnt vmcnt(0)\n')
open(sys.argv[2],'w').write(src)
```
